```python
import torch

def _softmax(x, axis=-1):
    return torch.softmax(x, dim=axis)

def _gelu(x):
    return torch.nn.functional.gelu(x, approximate='tanh')

def _silu(x):
    return torch.nn.functional.silu(x)

def _sigmoid(x):
    return torch.sigmoid(x)

def _layernorm(x, axis=-1, eps=1e-05):
    m = x.mean(dim=axis, keepdim=True)
    v = x.var(dim=axis, keepdim=True, unbiased=False)
    return (x - m) / torch.sqrt(v + eps)

def _scatter_add(tgt, idx, src, axis=0):
    return tgt.clone().index_add_(axis, idx, src)

def _segment_sum(src, seg, n):
    out = torch.zeros((n,) + src.shape[1:], dtype=src.dtype)
    return out.index_add_(0, seg, src)

def _pad(x, pw):
    flat = tuple((v for pair in reversed(pw) for v in pair))
    return torch.nn.functional.pad(x, flat)
kernel_name = 'adaLN_cond__mha_block_cached__mixer_channel_mlp__decode'

def setup_inputs():

    _w = lambda a: (lambda t: t.to(torch.bfloat16) if t.is_floating_point() else t)(torch.as_tensor(a))

    def _A_setup():
        B, Sq, D = (1, 1, 512)
        H, Sk, Dh = (32, 4096, 128)
        return {'x': _w((lambda *s: torch.randn(*s, dtype=torch.bfloat16) * 0.1)(B, Sq, D)), 'k_cache': _w((lambda *s: torch.randn(*s, dtype=torch.bfloat16) * 0.8)(B, H, Sk, Dh)), 'v_cache': _w((lambda *s: torch.randn(*s, dtype=torch.bfloat16) * 0.8)(B, H, Sk, Dh)), 'wq': _w((lambda *s: torch.randn(*s, dtype=torch.bfloat16) * 0.8)(D, H * Dh) * D ** (-0.5)), 'wo': _w((lambda *s: torch.randn(*s, dtype=torch.bfloat16) * 0.8)(H * Dh, D) * (H * Dh) ** (-0.5))}
    _A_in = _A_setup()

    def _B_setup():
        B, S, D, F = (1, 1, 512, 1376)
        return {'x': _w((lambda *s: torch.randn(*s, dtype=torch.bfloat16) * 0.1)(B, S, D)), 'w1': _w((lambda *s: torch.randn(*s, dtype=torch.bfloat16) * 3.2)(D, F) * D ** (-0.5)), 'b1': _w((lambda *s: torch.randn(*s, dtype=torch.bfloat16) * 3.2)(F)), 'w2': _w((lambda *s: torch.randn(*s, dtype=torch.bfloat16) * 3.2)(F, D) * F ** (-0.5)), 'b2': _w((lambda *s: torch.randn(*s, dtype=torch.bfloat16) * 3.2)(D))}
    _B_in = _B_setup()
    return {'A_x': _A_in['x'], 'A_k_cache': _A_in['k_cache'], 'A_v_cache': _A_in['v_cache'], 'A_wq': _A_in['wq'], 'A_wo': _A_in['wo'], 'B_x': _B_in['x'], 'B_w1': _B_in['w1'], 'B_b1': _B_in['b1'], 'B_w2': _B_in['w2'], 'B_b2': _B_in['b2'], 'c': _w((lambda *s: torch.randn(*s, dtype=torch.bfloat16) * 0.4)(1, 512) * 8.0), 'w_mod': _w((lambda *s: torch.randn(*s, dtype=torch.bfloat16) * 0.4)(512, 6 * 512) * 512 ** (-0.5) * 8.0)}

def reference(A_x, A_k_cache, A_v_cache, A_wq, A_wo, B_x, B_w1, B_b1, B_w2, B_b2, c, w_mod):

    def _A_ref(x, k_cache, v_cache, wq, wo):
        B, Sq, D = x.shape
        H, Dh = (32, 128)
        q = (lambda x, *d: x.permute(*d))((x @ wq).reshape(B, Sq, H, Dh), 0, 2, 1, 3)
        scores = torch.einsum('bhqd,bhkd->bhqk', q, k_cache) * Dh ** (-0.5)
        p = _softmax(scores, axis=-1)
        o = torch.einsum('bhqk,bhkd->bhqd', p, v_cache)
        return (lambda x, *d: x.permute(*d))(o, 0, 2, 1, 3).reshape(B, Sq, H * Dh) @ wo

    def _B_ref(x, w1, b1, w2, b2):
        y = _layernorm(x, axis=-1)
        h = _gelu(torch.einsum('bsd,df->bsf', y, w1) + b1)
        return torch.einsum('bsf,fd->bsd', h, w2) + b2
    x = A_x
    mod = (_silu(c) @ w_mod).reshape(c.shape[0], 6, 1, -1)
    sa, ca, ga, sb, cb, gb = (mod[:, 0].clone(), mod[:, 1].clone(), mod[:, 2].clone(), mod[:, 3].clone(), mod[:, 4].clone(), mod[:, 5].clone())
    h = _layernorm(x, axis=-1) * (1 + ca) + sa
    x = x + ga * _A_ref(h, A_k_cache, A_v_cache, A_wq, A_wo)
    h = _layernorm(x, axis=-1) * (1 + cb) + sb
    x = x + gb * _B_ref(h, B_w1, B_b1, B_w2, B_b2)
    return x
```

```python
import re

def _regs(tok):
    tok = tok.strip()
    tok = re.sub(r'^-|^abs\(|\)$|^\|', '', tok)
    tok = tok.strip('|')
    m = re.fullmatch(r'([vs])(\d+)', tok)
    if m: return {(m.group(1), int(m.group(2)))}
    m = re.fullmatch(r'([vs])\[(\d+):(\d+)\]', tok)
    if m: return {(m.group(1), i) for i in range(int(m.group(2)), int(m.group(3))+1)}
    if tok == 'vcc': return {('s', 106), ('s', 107)}
    if tok == 'vcc_lo': return {('s', 106)}
    if tok == 'vcc_hi': return {('s', 107)}
    if tok == 'exec': return {('s', 126), ('s', 127)}
    if tok == 'm0': return {('s', 124)}
    return set()

TRANS = ('v_exp_f32','v_log_f32','v_rcp_f32','v_rsq_f32','v_sqrt_f32','v_sin_f32','v_cos_f32')

class Ins:
    def __init__(self, text):
        self.text = text
        t = text.split(';')[0].strip()
        parts = t.split(None, 1)
        self.op = parts[0]
        rest = parts[1] if len(parts) > 1 else ''
        ops = [o.strip() for o in re.split(r',(?![^\[]*\])', rest)] if rest else []
        mods = ''
        if ops:
            last = ops[-1].split(None, 1)
            ops[-1] = last[0]
            mods = last[1] if len(last) > 1 else ''
        self.ops, self.mods = ops, mods
        op = self.op
        self.valu = op.startswith('v_') and not op.startswith('v_mfma')
        self.mfma = op.startswith('v_mfma')
        self.vmem = op.startswith(('buffer_', 'global_'))
        self.ds = op.startswith('ds_')
        self.dpp = op.endswith('_dpp') or bool(re.search(r'row_|quad_perm', mods))
        self.trans = op.replace('_e32','').replace('_e64','') in TRANS
        self.dot = op.startswith('v_dot')
        self.perml = op.startswith('v_permlane')
        self.rdlane = op.startswith(('v_readlane', 'v_readfirstlane'))
        self.wr, self.rd = set(), set()
        self.srcC = set(); self.srcAB = set(); self.dppsrc = set(); self.stdata = set()
        R = [_regs(o) for o in ops]
        if self.mfma:
            self.wr = R[0]; self.srcAB = R[1] | R[2]; self.srcC = R[3]; self.rd = self.srcAB | self.srcC
        elif self.valu:
            if op == 'v_nop': pass
            elif self.perml:
                self.wr = R[0] | R[1]; self.rd = R[0] | R[1]
            else:
                self.wr = set(R[0])
                for r in R[1:]: self.rd |= r
                if op.startswith(('v_fmac', 'v_dot2c', 'v_mac', 'v_writelane')): self.rd |= R[0]
                if op.startswith('v_cndmask') and len(ops) == 3: self.rd |= _regs('vcc')
                if self.dot:
                    if op.startswith('v_dot2c'):
                        self.srcC = R[0]; self.srcAB = R[1] | R[2]
                    else:
                        self.srcC = R[3]; self.srcAB = R[1] | R[2]
                if self.dpp: self.dppsrc = R[1]
        elif self.vmem:
            if 'load' in op:
                if 'lds' in mods.split():
                    for r in R: self.rd |= r
                else:
                    self.wr = R[0]
                    for r in R[1:]: self.rd |= r
            else:
                for r in R: self.rd |= r
                if op.startswith('buffer_store'): self.stdata = R[0]
                elif op.startswith('global_store'): self.stdata = R[1]
                if not re.search(r'x[34]$', op): self.stdata = set()
        elif self.ds:
            if op.startswith(('ds_read', 'ds_bpermute', 'ds_swizzle', 'ds_permute')):
                self.wr = R[0]
                for r in R[1:]: self.rd |= r
            else:
                for r in R: self.rd |= r
        self.states = 1
        if op == 's_nop': self.states = int(ops[0], 0) + 1

def need(p, c):
    n = 0
    vw = {r for r in p.wr if r[0] == 'v'}
    sw = {r for r in p.wr if r[0] == 's'}
    if p.valu:
        if c.valu and c.dpp and (vw & c.dppsrc): n = max(n, 2)
        if c.perml and (vw & c.rd): n = max(n, 2)
        if c.mfma and (vw & c.rd): n = max(n, 2)
        if p.trans and (c.valu or c.mfma) and (vw & c.rd): n = max(n, 1)
        if c.rdlane and (vw & c.rd): n = max(n, 1)
        if sw:
            if c.valu and (sw & c.rd): n = max(n, 4 if (c.rdlane or c.op.startswith('v_writelane')) else 2)
            if c.vmem and (sw & c.rd): n = max(n, 5)
        if p.dot:
            same = c.op.replace('_dpp','') == p.op.replace('_dpp','')
            if same:
                if vw & c.srcAB: n = max(n, 3)
            elif (vw & (c.rd | c.wr)): n = max(n, 3)
    if p.mfma:
        if c.mfma:
            if vw & c.srcAB: n = max(n, 8)
            if (vw & c.srcC) and vw != c.srcC: n = max(n, 6)
            if (vw & c.wr) and not (vw & c.srcC): n = max(n, 8)
        elif (c.valu or c.vmem or c.ds) and (vw & (c.rd | c.wr)): n = max(n, 8)
        if c.valu and (p.srcC & c.wr): n = max(n, 3)
    if p.stdata and (c.valu or c.vmem or c.ds or c.mfma) and (p.stdata & c.wr): n = max(n, 2)
    return n

class Asm:
    def __init__(self):
        self.out = []
        self.hist = []
        self.nlab = 0
    def raw(self, s): self.out.append(s)
    def label(self, name):
        self.out.append(name + ':')
    def newlabel(self, base='L'):
        self.nlab += 1
        return f'{base}_{self.nlab}'
    def __call__(self, text):
        for line in text.strip().split('\n'):
            line = line.strip()
            if not line or line.startswith(';'):
                if line: self.out.append('    ' + line)
                continue
            if line.endswith(':') or line.startswith('.'):
                self.out.append(line); continue
            c = Ins(line)
            dist = 0; req = 0
            for p in reversed(self.hist):
                k = need(p, c) - dist
                req = max(req, k)
                dist += p.states
                if dist >= 12: break
            if req > 0:
                nop = Ins(f's_nop {req-1}')
                self.out.append(f'    s_nop {req-1}')
                self.hist.append(nop)
            self.out.append('    ' + line)
            self.hist.append(c)
            self.hist = self.hist[-16:]
            if c.op in ('s_branch', 's_endpgm', 's_setpc_b64'):
                self.hist = []
    def flush(self, n=8):
        self(f's_nop {n-1}')
    def text(self): return '\n'.join(self.out)
```

```python
import sys, argparse
from asmlib import Asm

NAME = 'adaLN_cond__mha_block_cached__mixer_channel_mlp__decode'
WS_EPOCH = 0
WS_MOD = 0x1000
WS_QP  = 0x10000
WS_ST  = 0x30000
WS_OP  = 0x40000
WS_AP  = 0x60000
WS_ZP  = 0x70000
WS_SIZE = 0xA0000
L_FLAGQ = 0; L_FLAG1 = 4
L_Q = 64; L_H = 512; L_SC = 1024; L_P = 2048; L_ML = 4096
L_R2 = 4352; L_SA = 4608; L_SB2 = 4672; L_R3 = 4864
L_OP = 8192
L_GA = 16384; L_C1 = L_GA + 2048; L_SBV = L_GA + 4096; L_GB = L_GA + 6144
L_X1 = 24576
LDS_BYTES = 26624
LOG2E = 0x3fb8aa3b
SPIN_MAX = 200000

def f32(x):
    import struct
    return '0x%08x' % struct.unpack('<I', struct.pack('<f', x))[0]

class G:
    def __init__(self, o):
        self.o = o
        self.a = Asm()
    def stamp(self, k):
        if self.o.stamps: self.a(f's_memrealtime s[{80+2*k}:{81+2*k}]')
    def srd(self, d, p, size):
        a = self.a
        a(f's_mov_b32 s{d}, s{p}')
        a(f's_and_b32 s{d+1}, s{p+1}, 0xffff')
        a(f's_mov_b32 s{d+2}, {size}')
        a(f's_mov_b32 s{d+3}, 0x20000')
    def tag_setup(self):
        a = self.a
        a('s_add_u32 s46, s46, 1')
        a('s_and_b32 s47, s46, 0xff')
    def rnd(self, d, s):
        self.a(f'v_cvt_pk_bf16_f32 v{d}, 0, v{s}')
    def masks(self, m, t):
        a = self.a
        a(f'v_and_b32 v{t}, 1, v0')
        a(f'v_lshlrev_b32 v{t}, 4, v{t}')
        a(f'v_mov_b32 v{t+1}, 0xffff')
        a(f'v_lshlrev_b32 v{t}, v{t}, v{t+1}')
        a(f'v_bfe_u32 v{t+1}, v0, 1, 2')
        for r in range(4):
            a(f'v_cmp_eq_u32 vcc, {r}, v{t+1}')
            a(f'v_cndmask_b32 v{m+r}, 0, v{t}, vcc')
    def untag_check(self, regs, acc, retry):
        a = self.a
        for r in regs: a(f'v_xor_b32 v{r}, s47, v{r}')
        rs = list(regs)
        if len(rs) >= 3:
            a(f'v_or3_b32 v{acc}, v{rs[0]}, v{rs[1]}, v{rs[2]}'); rs = rs[3:]
        else:
            a(f'v_or_b32 v{acc}, v{rs[0]}, v{rs[1]}'); rs = rs[2:]
        while len(rs) >= 2:
            a(f'v_or3_b32 v{acc}, v{acc}, v{rs[0]}, v{rs[1]}'); rs = rs[2:]
        if rs: a(f'v_or_b32 v{acc}, v{acc}, v{rs[0]}')
        a(f'v_and_b32 v{acc}, 0xff, v{acc}')
        a(f'v_cmp_ne_u32 vcc, 0, v{acc}')
        a(f's_cbranch_vccnz {retry}')
    def poll(self, issue, regs, acc, sleep=1):
        a = self.a
        top = a.newlabel('Lpoll'); retry = a.newlabel('Lretry'); done = a.newlabel('Ldone')
        a('s_mov_b32 s15, 0')
        a(f's_branch {top}')
        a.label(retry)
        a('s_add_u32 s15, s15, 1')
        a(f's_cmp_gt_u32 s15, {SPIN_MAX}')
        a(f's_cbranch_scc1 {done}')
        if sleep: a(f's_sleep {sleep}')
        a.label(top)
        issue()
        a('s_waitcnt vmcnt(0)')
        self.untag_check(regs, acc, retry)
        a.label(done)
    def tagw(self, r, vt):
        self.a(f'v_and_or_b32 v{r}, v{r}, s72, v{vt}')
    def allred_rows(self, op, r, t):
        a = self.a
        a(f'v_mov_b32 v{t}, v{r}')
        a(f'v_permlane16_swap_b32 v{r}, v{t}')
        a(f'{op} v{r}, v{r}, v{t}')
        a(f'v_mov_b32 v{t}, v{r}')
        a(f'v_permlane32_swap_b32 v{r}, v{t}')
        a(f'{op} v{r}, v{r}, v{t}')
    def allred_row(self, op, r):
        a = self.a
        for m in ('quad_perm:[1,0,3,2]', 'quad_perm:[2,3,0,1]', 'row_half_mirror', 'row_mirror'):
            a(f'{op}_dpp v{r}, v{r}, v{r} {m} row_mask:0xf bank_mask:0xf')
    def sum8(self, g, w=None):
        a = self.a
        if w is None:
            for d in range(4): a(f'v_add_f32 v{g+d}, v{g+d}, v{g+4+d}')
            for d in range(4): a(f'v_add_f32 v{g+8+d}, v{g+8+d}, v{g+12+d}')
            for d in range(4): a(f'v_add_f32 v{g+d}, v{g+d}, v{g+8+d}')
        else:
            for d in range(4): a(f'v_mul_f32 v{g+d}, v{w}, v{g+d}')
            for k in range(1, 4):
                for d in range(4): a(f'v_fmac_f32 v{g+d}, v{w+k}, v{g+4*k+d}')
        a(f'v_permlane32_swap_b32 v{g}, v{g+2}')
        a(f'v_permlane32_swap_b32 v{g+1}, v{g+3}')
        a(f'v_add_f32 v{g}, v{g}, v{g+2}')
        a(f'v_add_f32 v{g+1}, v{g+1}, v{g+3}')
        return g, g+1
    def pair16(self, raw, dst):
        a = self.a
        for k in range(8):
            a(f'v_perm_b32 v{dst+2*k}, v{raw+8+k}, v{raw+k}, s73')
            a(f'v_perm_b32 v{dst+2*k+1}, v{raw+8+k}, v{raw+k}, s74')
    def gemv16(self, P, pk, z):
        a = self.a
        for n in range(16): a(f'v_dot2_f32_bf16 v{z+n}, v{P+n}, v{pk}, 0')
        for n in range(8): a(f'v_permlane32_swap_b32 v{z+n}, v{z+n+8}')
        for n in range(8): a(f'v_add_f32 v{z+n}, v{z+n}, v{z+n+8}')
        for n in range(4): a(f'v_permlane16_swap_b32 v{z+n}, v{z+n+4}')
        for n in range(4): a(f'v_add_f32 v{z+n}, v{z+n}, v{z+n+4}')
        for n in range(2): a(f'v_add_f32_dpp v{z+n}, v{z+n}, v{z+n} row_ror:8 row_mask:0xf bank_mask:0x3')
        for n in range(2): a(f'v_add_f32_dpp v{z+n}, v{z+n+2}, v{z+n+2} row_ror:8 row_mask:0xf bank_mask:0xc')
        a(f'v_add_f32_dpp v{z}, v{z}, v{z} row_shl:4 row_mask:0xf bank_mask:0x5')
        a(f'v_add_f32_dpp v{z}, v{z+1}, v{z+1} row_shr:4 row_mask:0xf bank_mask:0xa')
        a(f'v_add_f32_dpp v{z}, v{z}, v{z} quad_perm:[1,0,3,2] row_mask:0xf bank_mask:0xf')
        a(f'v_add_f32_dpp v{z}, v{z}, v{z} quad_perm:[2,3,0,1] row_mask:0xf bank_mask:0xf')
    def ln_scalars(self, S1, S2, m, rs, t):
        a = self.a
        a(f'v_mul_f32 v{S1}, {f32(1/512)}, v{S1}')
        a(f'v_mul_f32 v{S2}, {f32(1/512)}, v{S2}')
        a(f'v_fma_f32 v{S2}, -v{S1}, v{S1}, v{S2}')
        self.rnd(m, S1)
        a(f'v_max_f32 v{S2}, 0, v{S2}')
        self.rnd(t, S2)
        a(f'v_add_f32 v{t}, {f32(1e-5)}, v{t}')
        self.rnd(t, t)
        a(f'v_sqrt_f32 v{t}, v{t}')
        self.rnd(t, t)
        a(f'v_rcp_f32 v{rs}, v{t}')
    def lds_spin(self, off, extra=None):
        a = self.a
        top = a.newlabel('Lspin'); done = a.newlabel('Lspd')
        a('s_mov_b32 s15, 0')
        a('v_mov_b32 v2, 0')
        a.label(top)
        a(f'ds_read_b32 v3, v2 offset:{off}')
        if extra: extra()
        a('s_waitcnt lgkmcnt(0)')
        a('v_readfirstlane_b32 s14, v3')
        a('s_add_u32 s15, s15, 1')
        a('s_cmp_lg_u32 s14, 0')
        a(f's_cbranch_scc1 {done}')
        a(f's_cmp_gt_u32 s15, {SPIN_MAX*8}')
        a(f's_cbranch_scc1 {done}')
        a('s_sleep 1')
        a(f's_branch {top}')
        a.label(done)
    def finish(self):
        a = self.a
        if self.o.stamps: a('s_branch L_dump')
        else: a('s_endpgm')

    def build(self):
        a, o = self.a, self.o
        NT = o.kvflags
        a('s_cmp_ge_u32 s2, 256')
        a('s_cbranch_scc1 L_end')
        if o.stamps:
            for k in range(10): a(f's_mov_b64 s[{80+2*k}:{81+2*k}], 0')
        self.stamp(0)
        a('s_load_dwordx16 s[16:31], s[0:1], 0')
        a('s_load_dwordx8 s[32:39], s[0:1], 64')
        a('s_load_dwordx4 s[40:43], s[0:1], 96')
        a('s_load_dwordx2 s[44:45], s[0:1], 112')
        a('v_lshrrev_b32 v1, 6, v0')
        a('v_and_b32 v0, 63, v0')
        a('v_readfirstlane_b32 s3, v1')
        a('s_and_b32 s4, s2, 7')
        a('s_lshr_b32 s5, s2, 3')
        a('s_and_b32 s6, s5, 3')
        a('s_lshl_b32 s8, s4, 2')
        a('s_add_u32 s6, s6, s8')
        a('s_lshr_b32 s7, s5, 2')
        a('s_mov_b32 s72, 0xffffff00')
        a('s_cmp_lt_u32 s3, 2')
        a('s_cbranch_scc1 L_S')
        a('s_sub_u32 s9, s3, 2')
        a('s_and_b32 s9, s9, 3')
        a('s_lshl_b32 s10, s6, 20')
        a(f's_lshl_b32 s11, s7, {17 if o.pattern=="inter" else 12}')
        a('s_add_u32 s10, s10, s11')
        a('s_lshl_b32 s11, s9, 10')
        a('s_add_u32 s10, s10, s11')
        a('v_lshlrev_b32 v1, 4, v0')
        a('v_add_u32 v1, s10, v1')
        step = 4096 if o.pattern == 'inter' else 32768
        if o.rot == 'hash':
            a('s_mul_i32 s12, s2, 0x9E3779B1'); a('s_lshr_b32 s12, s12, 27')
        elif o.rot == 'h': a('s_mov_b32 s12, s6')
        else: a('s_mov_b32 s12, 0')
        a(f's_mul_i32 s12, s12, {step}')
        a(f's_mov_b32 s13, {step}')
        a(f's_mov_b32 s14, {step*32-1}')
        a('s_mov_b32 s54, 33554432')
        a('s_mov_b32 s55, 0x20000')
        a('s_cmp_ge_u32 s3, 6')
        a('s_cbranch_scc0 L_kv0')
        a('s_barrier')
        a.label('L_kv0')
        a('s_waitcnt lgkmcnt(0)')
        a('s_cselect_b32 s52, s20, s18')
        a('s_cselect_b32 s53, s21, s19')
        a('s_and_b32 s53, s53, 0xffff')
        a(f's_load_dword s46, s[44:45], {WS_EPOCH}')
        for t in range(32):
            a(f'buffer_load_dwordx4 v[{40+4*t}:{43+4*t}], v1, s[52:55], s12 offen {NT}')
            if t < 31:
                a('s_add_u32 s12, s12, s13')
                a('s_and_b32 s12, s12, s14')
            if t == 7:
                a('s_cmp_ge_u32 s3, 6')
                a('s_cbranch_scc1 L_kv1')
                a('s_barrier')
                a.label('L_kv1')
        self.stamp(1)
        self.srd(48, 44, WS_SIZE)
        a('s_waitcnt lgkmcnt(0)')
        self.tag_setup()
        a('s_cmp_ge_u32 s3, 6')
        a('s_cbranch_scc1 L_V')
        self.kpath()
        self.vpath()
        self.spath()
        if o.stamps: self.dump()
        a.label('L_end')
        a('s_endpgm')

    def kpath(self):
        a, o = self.a, self.o
        a('v_and_b32 v8, 15, v0')
        a('v_lshlrev_b32 v8, 4, v8')
        self.lds_spin(L_FLAGQ, lambda: a(f'ds_read_b128 v[4:7], v8 offset:{L_Q}'))
        self.stamp(2)
        for blk in range(4):
            a(f's_waitcnt vmcnt({24-8*blk})')
            ts = range(8*blk, 8*blk+8)
            for t in ts: a(f'v_dot2_f32_bf16 v{40+4*t}, v{40+4*t}, v4, 0')
            for j in range(1, 4):
                for t in ts: a(f'v_dot2_f32_bf16 v{40+4*t}, v{40+4*t+j}, v{4+j}, v{40+4*t}')
            R = lambda t: 40+4*t
            for t in ts[0::2]: a(f'v_add_f32_dpp v{R(t)}, v{R(t)}, v{R(t)} row_ror:8 row_mask:0xf bank_mask:0x3')
            for t in ts[0::2]: a(f'v_add_f32_dpp v{R(t)}, v{R(t+1)}, v{R(t+1)} row_ror:8 row_mask:0xf bank_mask:0xc')
            for t in ts[0::4]: a(f'v_add_f32_dpp v{R(t)}, v{R(t)}, v{R(t)} row_shl:4 row_mask:0xf bank_mask:0x5')
            for t in ts[0::4]: a(f'v_add_f32_dpp v{R(t)}, v{R(t+2)}, v{R(t+2)} row_shr:4 row_mask:0xf bank_mask:0xa')
        U = [40+16*u for u in range(8)]
        for m in ('quad_perm:[1,0,3,2]', 'quad_perm:[2,3,0,1]'):
            for r in U: a(f'v_add_f32_dpp v{r}, v{r}, v{r} {m} row_mask:0xf bank_mask:0xf')
        for q, pat in ((1, 0x22222222), (2, 0x44444444), (3, 0x88888888)):
            a(f's_mov_b32 s10, {pat:#x}'); a(f's_mov_b32 s11, {pat:#x}')
            a(f'v_cndmask_b32 v{U[0]}, v{U[0]}, v{U[q]}, s[10:11]')
            a(f'v_cndmask_b32 v{U[4]}, v{U[4]}, v{U[4+q]}, s[10:11]')
        A, B = U[0], U[4]
        for r in (A, B): self.rnd(r, r)
        for r in (A, B): a(f'v_mul_f32 v{r}, {f32(128**-0.5)}, v{r}')
        for r in (A, B): self.rnd(r, r)
        a(f'v_max_f32 v10, v{A}, v{B}')
        self.allred_row('v_max_f32', 10)
        self.allred_rows('v_max_f32', 10, 12)
        for r in (A, B): a(f'v_sub_f32 v{r}, v{r}, v10')
        for r in (A, B): a(f'v_mul_f32 v{r}, {LOG2E:#x}, v{r}')
        for r in (A, B): a(f'v_exp_f32 v{r}, v{r}')
        a('v_lshrrev_b32 v13, 3, v0')
        a('v_lshlrev_b32 v13, 6, v13')
        a('v_and_b32 v14, 3, v0')
        a('v_lshl_add_u32 v13, v14, 3, v13')
        a('v_and_b32 v14, 4, v0')
        a('v_add_u32 v13, v13, v14')
        a('s_lshl_b32 s10, s9, 9')
        a('v_add_u32 v13, s10, v13')
        a(f'v_add_f32 v11, v{A}, v{B}')
        for r in (A, B): a(f'v_cvt_pk_bf16_f32 v{r}, v{r}, v{r}')
        a(f'ds_write_b32 v13, v{A} offset:{L_P}')
        a(f'ds_write_b32 v13, v{B} offset:{L_P+32}')
        self.allred_row('v_add_f32', 11)
        self.allred_rows('v_add_f32', 11, 12)
        a('s_lshl_b32 s10, s9, 3')
        a('v_mov_b32 v12, s10')
        a('s_mov_b64 exec, 1')
        a(f'ds_write_b64 v12, v[10:11] offset:{L_ML}')
        a('s_mov_b64 exec, -1')
        a('s_mov_b32 s73, 0x05040100')
        a('s_mov_b32 s74, 0x07060302')
        a('v_mov_b32 v9, s47')
        a('v_lshrrev_b32 v14, 5, v0')
        a('v_and_b32 v15, 31, v0')
        a('v_lshlrev_b32 v16, 1, v15')
        a('v_add_u32 v16, v16, v14')
        a('s_lshl_b32 s10, s9, 6')
        a('v_add_u32 v17, s10, v16')
        a('v_lshlrev_b32 v18, 11, v17')
        a('s_lshl_b32 s75, s4, 19')
        a('s_lshl_b32 s10, s5, 5')
        a('s_add_u32 s75, s75, s10')
        self.srd(56, 24, 4194304)
        a('s_mul_i32 s76, s4, 11')
        a('s_add_u32 s76, s76, s5')
        a('s_cmp_lt_u32 s5, 11')
        a('s_cselect_b32 s76, s76, 100')
        a('s_cmp_lt_u32 s76, 86')
        a('s_cselect_b32 s77, 1, 0')
        self.srd(60, 28, 1409024)
        self.srd(64, 32, 1409024)
        a('s_movk_i32 s10, 5504')
        a('v_mul_lo_u32 v19, v17, s10')
        a('v_lshlrev_b32 v20, 2, v0')
        a('v_lshlrev_b32 v21, 4, v0')
        a('v_lshlrev_b32 v22, 4, v14')
        WF = o.wflags
        def issue_wo():
            for i, off in enumerate((0, 16, 1024, 1040)):
                a(f'buffer_load_dwordx4 v[{40+4*i}:{43+4*i}], v18, s[56:59], s75 offen offset:{off} {WF}')
        if o.wo_early: issue_wo()
        a('s_waitcnt lgkmcnt(0)')
        self.stamp(3)
        a('s_barrier')
        if not o.wo_early: issue_wo()
        a('s_cmp_lg_u32 s9, 0')
        a('s_cbranch_scc1 L_nost')
        a('v_mov_b32 v12, 0')
        a(f'ds_read_b128 v[24:27], v12 offset:{L_ML}')
        a(f'ds_read_b128 v[28:31], v12 offset:{L_ML+16}')
        a('s_waitcnt lgkmcnt(0)')
        a('v_max3_f32 v10, v24, v26, v28')
        a('v_max_f32 v10, v10, v30')
        for r in (24, 26, 28, 30): a(f'v_sub_f32 v{r}, v{r}, v10')
        for r in (24, 26, 28, 30): a(f'v_mul_f32 v{r}, {LOG2E:#x}, v{r}')
        for r in (24, 26, 28, 30): a(f'v_exp_f32 v{r}, v{r}')
        a('v_mul_f32 v11, v24, v25')
        for r in (26, 28, 30): a(f'v_fmac_f32 v11, v{r}, v{r+1}')
        self.tagw(10, 9); self.tagw(11, 9)
        a('s_lshl_b32 s10, s6, 7')
        a('s_lshl_b32 s11, s7, 4')
        a('s_add_u32 s10, s10, s11')
        a(f's_add_u32 s10, s10, {WS_ST}')
        a('s_mov_b64 exec, 1')
        a('buffer_store_dwordx2 v[10:11], v12, s[48:51], s10 offen sc1')
        a('s_mov_b64 exec, -1')
        a.label('L_nost')
        a('s_cmp_eq_u32 s77, 0')
        a('s_cbranch_scc1 L_nomlpw')
        a('s_lshl_b32 s10, s76, 5')
        for i, off in enumerate((0, 16, 2752, 2768)):
            a(f'buffer_load_dwordx4 v[{72+4*i}:{75+4*i}], v19, s[60:63], s10 offen offset:{off} {WF}')
        a('s_lshl_b32 s10, s76, 14')
        a('s_lshl_b32 s11, s9, 8')
        a('s_add_u32 s10, s10, s11')
        for f in range(16):
            a(f'buffer_load_dword v{104+f}, v20, s[64:67], s10 offen offset:{(f%4)*1024} {WF}')
            if f % 4 == 3 and f < 15: a('s_add_u32 s10, s10, 4096')
        self.srd(68, 16, 1024)
        a('v_lshlrev_b32 v23, 2, v17')
        a('buffer_load_dword v24, v23, s[68:71], 0 offen')
        self.srd(68, 30, 2752)
        a('v_and_b32 v25, 15, v0')
        a('v_lshlrev_b32 v25, 1, v25')
        a('s_lshl_b32 s10, s76, 5')
        a('buffer_load_ushort v25, v25, s[68:71], s10 offen')
        self.srd(68, 34, 1024)
        a('s_lshl_b32 s78, s4, 6')
        a('s_lshl_b32 s10, s5, 4')
        a('s_add_u32 s78, s78, s10')
        a('s_lshl_b32 s10, s9, 2')
        a('s_add_u32 s78, s78, s10')
        a('s_and_b32 s78, s78, 511')
        a('v_lshrrev_b32 v26, 4, v0')
        a('v_add_u32 v26, s78, v26')
        a('v_lshlrev_b32 v27, 1, v26')
        a('buffer_load_ushort v28, v27, s[68:71], 0 offen')
        a('v_lshlrev_b32 v23, 3, v17')
        a(f'ds_read_b64 v[30:31], v23 offset:{L_GA}')
        a(f'ds_read_b64 v[32:33], v23 offset:{L_C1}')
        a(f'ds_read_b64 v[34:35], v23 offset:{L_SBV}')
        a('v_lshlrev_b32 v26, 2, v26')
        a(f'ds_read_b32 v29, v26 offset:{L_GB}')
        a.label('L_nomlpw')
        a('s_barrier')
        self.stamp(4)
        a('s_waitcnt vmcnt(0) lgkmcnt(0)')
        self.pair16(40, 56)
        a('s_cmp_eq_u32 s77, 0')
        a('s_cbranch_scc1 L_nopair')
        self.pair16(72, 88)
        for k in range(8):
            a(f'v_perm_b32 v{120+k}, v{105+2*k}, v{104+2*k}, s73')
            a(f'v_perm_b32 v{128+k}, v{105+2*k}, v{104+2*k}, s74')
        a('v_lshlrev_b32 v36, 16, v24')
        a('v_and_b32 v37, 0xffff0000, v24')
        a('v_lshlrev_b32 v25, 16, v25')
        a('v_lshlrev_b32 v28, 16, v28')
        a.label('L_nopair')
        a('s_lshl_b32 s10, s4, 2')
        a('s_add_u32 s10, s10, s9')
        a('s_lshl_b32 s11, s10, 12')
        a(f's_add_u32 s11, s11, {WS_OP}')
        a('s_lshl_b32 s10, s10, 7')
        a(f's_add_u32 s10, s10, {WS_ST}')
        def iss():
            for k in range(4): a(f'buffer_load_dwordx2 v[{152+2*k}:{153+2*k}], v22, s[48:51], s10 offen offset:{32*k} sc1')
            for k in range(4): a(f'buffer_load_dwordx4 v[{136+4*k}:{139+4*k}], v21, s[48:51], s11 offen offset:{1024*k} sc1')
        self.poll(iss, range(136, 160), 10, sleep=o.sleep2)
        self.stamp(5)
        a('v_max3_f32 v10, v152, v154, v156')
        a('v_max_f32 v10, v10, v158')
        a('v_mov_b32 v11, v10')
        a('v_permlane32_swap_b32 v10, v11')
        a('v_max_f32 v10, v10, v11')
        for k in range(4): a(f'v_sub_f32 v{160+k}, v{152+2*k}, v10')
        for k in range(4): a(f'v_mul_f32 v{160+k}, {LOG2E:#x}, v{160+k}')
        for k in range(4): a(f'v_exp_f32 v{160+k}, v{160+k}')
        a('v_mul_f32 v10, v160, v153')
        for k in range(1, 4): a(f'v_fmac_f32 v10, v{160+k}, v{153+2*k}')
        a('v_mov_b32 v11, v10')
        a('v_permlane32_swap_b32 v10, v11')
        a('v_add_f32 v10, v10, v11')
        a('v_rcp_f32 v10, v10')
        X, Y = self.sum8(136, 160)
        a(f'v_mul_f32 v{X}, v10, v{X}')
        a(f'v_mul_f32 v{Y}, v10, v{Y}')
        a(f'v_cvt_pk_bf16_f32 v10, v{X}, v{Y}')
        self.gemv16(56, 10, 40)
        a('v_and_b32 v11, 60, v0')
        a('v_lshlrev_b32 v11, 2, v11')
        a('s_lshl_b32 s10, s9, 2')
        a('v_add_u32 v11, s10, v11')
        a('s_mov_b32 s10, 0x11111111'); a('s_mov_b32 s11, 0x11111111')
        a('s_mov_b64 exec, s[10:11]')
        a(f'ds_write_b32 v11, v40 offset:{L_R2}')
        a('s_mov_b64 exec, -1')
        a('s_waitcnt lgkmcnt(0)')
        a('s_barrier')
        a('s_cmp_lg_u32 s9, 0')
        a('s_cbranch_scc1 L_t2done')
        a('s_mov_b64 exec, 0xffff')
        a(f'ds_read_b128 v[40:43], v21 offset:{L_R2}')
        a('s_lshr_b32 s10, s5, 3')
        a('s_lshl_b32 s10, s10, 12')
        a('s_lshl_b32 s11, s4, 9')
        a('s_add_u32 s10, s10, s11')
        a('s_and_b32 s11, s5, 7')
        a('s_lshl_b32 s11, s11, 6')
        a('s_add_u32 s10, s10, s11')
        a(f's_add_u32 s10, s10, {WS_AP}')
        a('s_waitcnt lgkmcnt(0)')
        a('v_add_f32 v40, v40, v41')
        a('v_add_f32 v42, v42, v43')
        a('v_add_f32 v40, v40, v42')
        self.tagw(40, 9)
        a('buffer_store_dword v40, v20, s[48:51], s10 offen sc1')
        a('s_mov_b64 exec, -1')
        a.label('L_t2done')
        self.stamp(6)
        a('s_cmp_eq_u32 s77, 0')
        a('s_cbranch_scc1 L_fin')
        a('s_lshl_b32 s11, s9, 12')
        a(f's_add_u32 s11, s11, {WS_AP}')
        def iss3():
            for k in range(4): a(f'buffer_load_dwordx4 v[{136+4*k}:{139+4*k}], v21, s[48:51], s11 offen offset:{1024*k} sc1')
        self.poll(iss3, range(136, 152), 10, sleep=o.sleep3)
        self.stamp(7)
        X, Y = self.sum8(136)
        for r in (X, Y): self.rnd(r, r)
        a(f'v_mul_f32 v{X}, v30, v{X}'); a(f'v_mul_f32 v{Y}, v31, v{Y}')
        for r in (X, Y): self.rnd(r, r)
        a(f'v_add_f32 v{X}, v36, v{X}'); a(f'v_add_f32 v{Y}, v37, v{Y}')
        for r in (X, Y): self.rnd(r, r)
        a(f'ds_write_b64 v23, v[{X}:{Y}] offset:{L_X1}')
        a('s_lshl_b32 s10, s9, 2')
        a('v_add_u32 v12, s10, v22')
        a('v_mov_b32 v13, 0')
        a('s_mov_b32 s10, 1'); a('s_mov_b32 s11, 1')
        def ln(off):
            a(f'v_add_f32 v40, v{X}, v{Y}')
            a(f'v_mul_f32 v41, v{X}, v{X}')
            a(f'v_fmac_f32 v41, v{Y}, v{Y}')
            a('v_permlane32_swap_b32 v40, v41')
            a('v_add_f32 v40, v40, v41')
            self.allred_row('v_add_f32', 40)
            a('v_mov_b32 v41, v40')
            a('v_permlane16_swap_b32 v40, v41')
            a('v_add_f32 v40, v40, v41')
            a('s_mov_b64 exec, s[10:11]')
            a(f'ds_write_b32 v12, v40 offset:{off}')
            a('s_mov_b64 exec, -1')
            a('s_waitcnt lgkmcnt(0)')
            a('s_barrier')
            a(f'ds_read_b128 v[40:43], v13 offset:{off}')
            a(f'ds_read_b128 v[44:47], v13 offset:{off+16}')
            a('s_waitcnt lgkmcnt(0)')
            a('v_add_f32 v40, v40, v41'); a('v_add_f32 v44, v44, v45')
            a('v_add_f32 v42, v42, v43'); a('v_add_f32 v46, v46, v47')
            a('v_add_f32 v40, v40, v42'); a('v_add_f32 v44, v44, v46')
            self.ln_scalars(40, 44, 41, 42, 43)
            for r in (X, Y): a(f'v_sub_f32 v{r}, v{r}, v41')
            for r in (X, Y): self.rnd(r, r)
            for r in (X, Y): a(f'v_mul_f32 v{r}, v{r}, v42')
        ln(L_SA)
        for r in (X, Y): self.rnd(r, r)
        a(f'v_mul_f32 v{X}, v32, v{X}'); a(f'v_mul_f32 v{Y}, v33, v{Y}')
        for r in (X, Y): self.rnd(r, r)
        a(f'v_add_f32 v{X}, v34, v{X}'); a(f'v_add_f32 v{Y}, v35, v{Y}')
        for r in (X, Y): self.rnd(r, r)
        ln(L_SB2)
        a(f'v_cvt_pk_bf16_f32 v10, v{X}, v{Y}')
        self.gemv16(88, 10, 40)
        a('s_mov_b32 s10, 0x11111111'); a('s_mov_b32 s11, 0x11111111')
        a('s_mov_b64 exec, s[10:11]')
        a(f'ds_write_b32 v11, v40 offset:{L_R3}')
        a('s_mov_b64 exec, -1')
        a('v_and_b32 v12, 15, v0')
        a('v_lshlrev_b32 v12, 4, v12')
        a('s_waitcnt lgkmcnt(0)')
        a('s_barrier')
        a(f'ds_read_b128 v[40:43], v12 offset:{L_R3}')
        a(f'ds_read_b32 v38, v26 offset:{L_X1}')
        a('s_lshl_b32 s10, s76, 11')
        a('s_lshl_b32 s11, s9, 9')
        a('s_add_u32 s10, s10, s11')
        a(f's_add_u32 s10, s10, {WS_ZP}')
        a('v_lshlrev_b32 v12, 3, v0')
        a('s_waitcnt lgkmcnt(0)')
        a('v_add_f32 v40, v40, v41')
        a('v_add_f32 v42, v42, v43')
        a('v_add_f32 v40, v40, v42')
        self.rnd(40, 40)
        a('v_add_f32 v40, v40, v25')
        self.rnd(40, 40)
        k0 = 0.7978845608028654; k1 = 0.044715
        c1 = -2*k0*1.4426950408889634
        a('v_mul_f32 v41, v40, v40')
        a(f'v_mov_b32 v42, {f32(c1)}')
        a(f'v_fmac_f32 v42, {f32(c1*k1)}, v41')
        a('v_mul_f32 v41, v42, v40')
        a('v_exp_f32 v41, v41')
        a('v_add_f32 v41, 1.0, v41')
        a('v_rcp_f32 v41, v41')
        a('v_mul_f32 v40, v40, v41')
        a('v_mov_b32_dpp v41, v40 quad_perm:[1,0,3,2] row_mask:0xf bank_mask:0xf')
        a('v_cvt_pk_bf16_f32 v40, v40, v41')
        for r in (44, 45, 46, 47): a(f'v_mov_b32 v{r}, 0')
        for k in range(8):
            a(f'v_dot2c_f32_bf16_dpp v{44+2*(k&1)}, v40, v{120+k} row_newbcast:{2*k} row_mask:0xf bank_mask:0xf')
            a(f'v_dot2c_f32_bf16_dpp v{45+2*(k&1)}, v40, v{128+k} row_newbcast:{2*k} row_mask:0xf bank_mask:0xf')
        a('v_add_f32 v44, v44, v46')
        a('v_add_f32 v45, v45, v47')
        self.tagw(44, 9); self.tagw(45, 9)
        a('buffer_store_dwordx2 v[44:45], v12, s[48:51], s10 offen sc1')
        self.stamp(8)
        a('s_cmp_ge_u32 s5, 4')
        a('s_cbranch_scc1 L_fin')
        a('v_lshlrev_b32 v12, 11, v0')
        a('s_lshl_b32 s10, s78, 2')
        a(f's_add_u32 s10, s10, {WS_ZP}')
        a(f's_add_u32 s11, s10, {64*2048}')
        def iss4():
            a('buffer_load_dwordx4 v[136:139], v12, s[48:51], s10 offen sc1')
            for r in range(140, 144): a(f'v_mov_b32 v{r}, v9')
            a('s_mov_b64 exec, 0x3fffff')
            a('buffer_load_dwordx4 v[140:143], v12, s[48:51], s11 offen sc1')
            a('s_mov_b64 exec, -1')
        self.poll(iss4, range(136, 144), 10, sleep=o.sleep4)
        for d in range(4): a(f'v_add_f32 v{136+d}, v{136+d}, v{140+d}')
        a('v_permlane32_swap_b32 v136, v138')
        a('v_permlane32_swap_b32 v137, v139')
        a('v_add_f32 v136, v136, v138')
        a('v_add_f32 v137, v137, v139')
        a('v_permlane16_swap_b32 v136, v137')
        a('v_add_f32 v136, v136, v137')
        self.allred_row('v_add_f32', 136)
        self.rnd(136, 136)
        a('v_add_f32 v136, v136, v28')
        self.rnd(136, 136)
        a('v_mul_f32 v136, v136, v29')
        self.rnd(136, 136)
        a('v_add_f32 v136, v136, v38')
        a('v_cvt_pk_bf16_f32 v136, v136, v136')
        self.srd(68, 40, 1024)
        a('s_mov_b32 s10, 0x00010001'); a('s_mov_b32 s11, 0x00010001')
        a('s_mov_b64 exec, s[10:11]')
        a('buffer_store_short v136, v27, s[68:71], 0 offen')
        a('s_mov_b64 exec, -1')
        a('s_or_b32 s10, s2, s9')
        a('s_cmp_lg_u32 s10, 0')
        a('s_cbranch_scc1 L_fin')
        a('s_mov_b64 exec, 1')
        a('v_mov_b32 v12, 0')
        a('v_mov_b32 v13, s46')
        a(f'buffer_store_dword v13, v12, s[48:51], 0 offen offset:{WS_EPOCH}')
        a('s_mov_b64 exec, -1')
        a.label('L_fin')
        self.stamp(9)
        self.finish()

    def vpath(self):
        a, o = self.a, self.o
        a.label('L_V')
        self.masks(4, 2)
        a('v_lshrrev_b32 v1, 3, v0')
        a('v_lshlrev_b32 v1, 6, v1')
        a('s_lshl_b32 s10, s9, 9')
        a('v_add_u32 v1, s10, v1')
        a('s_lshl_b32 s10, s9, 3')
        a('v_mov_b32 v2, s10')
        a('v_mov_b32 v3, 0')
        a('s_barrier')
        self.stamp(2)
        a(f'ds_read_b128 v[24:27], v3 offset:{L_ML}')
        a(f'ds_read_b128 v[28:31], v3 offset:{L_ML+16}')
        a(f'ds_read_b32 v2, v2 offset:{L_ML}')
        for k in range(4): a(f'ds_read_b128 v[{8+4*k}:{11+4*k}], v1 offset:{L_P+16*k}')
        a('v_and_b32 v1, 15, v0')
        a('v_lshlrev_b32 v1, 5, v1')
        a('v_and_b32 v3, 16, v0')
        a('v_add_u32 v1, v1, v3')
        a('v_and_b32 v3, 32, v0')
        a('v_lshl_add_u32 v1, v3, 4, v1')
        a('s_lshl_b32 s10, s9, 10')
        a('v_add_u32 v1, s10, v1')
        a('s_waitcnt lgkmcnt(0)')
        a('v_max3_f32 v3, v24, v26, v28')
        a('v_max_f32 v3, v3, v30')
        a('v_sub_f32 v2, v2, v3')
        a(f'v_mul_f32 v2, {LOG2E:#x}, v2')
        a('v_exp_f32 v2, v2')
        def sel(u):
            for r in range(4): a(f'v_and_b32 v{24+4*(u&1)+r}, v{8+u}, v{4+r}')
        sel(0)
        a('v_mov_b32 v3, v2')
        for u in range(16):
            s = 24+4*(u&1)
            if u < 15: sel(u+1)
            a(f's_waitcnt vmcnt({31-2*u})')
            c0 = 'v[32:35]' if u else '0'
            c1 = 'v[36:39]' if u else '0'
            a(f'v_mfma_f32_16x16x32_bf16 v[32:35], v[{s}:{s+3}], v[{40+8*u}:{43+8*u}], {c0}')
            a(f's_waitcnt vmcnt({30-2*u})')
            a(f'v_mfma_f32_16x16x32_bf16 v[36:39], v[{s}:{s+3}], v[{44+8*u}:{47+8*u}], {c1}')
        self.stamp(3)
        a('s_mov_b32 s10, 0'); a('s_mov_b32 s11, -1')
        a('v_pk_mul_f32 v[24:25], v[32:33], v[2:3]')
        a('v_pk_mul_f32 v[26:27], v[34:35], v[2:3]')
        a('s_mov_b64 exec, s[10:11]')
        a('v_pk_mul_f32 v[24:25], v[36:37], v[2:3]')
        a('v_pk_mul_f32 v[26:27], v[38:39], v[2:3]')
        a('s_mov_b64 exec, -1')
        a(f'ds_write_b128 v1, v[24:27] offset:{L_OP}')
        a('v_lshlrev_b32 v1, 4, v0')
        a('s_waitcnt lgkmcnt(0)')
        a('s_barrier')
        a('s_cmp_lg_u32 s9, 0')
        a('s_cbranch_scc1 L_vfin')
        for k in range(4): a(f'ds_read_b128 v[{8+4*k}:{11+4*k}], v1 offset:{L_OP+1024*k}')
        a('v_mov_b32 v2, s47')
        a('v_and_b32 v3, 31, v0')
        a('v_lshlrev_b32 v3, 4, v3')
        a('v_lshrrev_b32 v4, 5, v0')
        a('v_lshl_add_u32 v3, v4, 3, v3')
        a('s_lshl_b32 s10, s6, 12')
        a('s_lshl_b32 s11, s7, 9')
        a('s_add_u32 s10, s10, s11')
        a(f's_add_u32 s10, s10, {WS_OP}')
        a('s_waitcnt lgkmcnt(0)')
        X, Y = self.sum8(8)
        self.tagw(X, 2); self.tagw(Y, 2)
        a(f'buffer_store_dwordx2 v[{X}:{Y}], v3, s[48:51], s10 offen sc1')
        a.label('L_vfin')
        self.stamp(4)
        self.finish()

    def spath(self):
        a, o = self.a, self.o
        WF = o.wflags
        a.label('L_S')
        a('s_cmp_eq_u32 s3, 1')
        a('s_cbranch_scc1 L_S1')
        a('s_sub_u32 s8, s5, 11')
        a('s_cmp_lt_u32 s8, 12')
        a('s_cbranch_scc0 L_S0m')
        a('s_mul_i32 s9, s4, 12')
        a('s_add_u32 s8, s8, s9')
        a('s_and_b32 s9, s8, 1')
        a('s_lshr_b32 s8, s8, 1')
        a('v_lshrrev_b32 v1, 3, v0')
        a(f's_mov_b32 s10, {32*6144}')
        a('v_mul_lo_u32 v2, v1, s10')
        a('v_and_b32 v3, 7, v0')
        a('v_lshl_add_u32 v2, v3, 4, v2')
        a(f's_mul_i32 s10, s9, {256*6144}')
        a('s_lshl_b32 s11, s8, 7')
        a('s_add_u32 s10, s10, s11')
        a('v_lshlrev_b32 v3, 3, v0')
        a('s_lshl_b32 s11, s9, 9')
        a('s_waitcnt lgkmcnt(0)')
        self.srd(52, 36, 1024)
        self.srd(56, 38, 3145728)
        a(f's_load_dword s46, s[44:45], {WS_EPOCH}')
        a('buffer_load_dwordx2 v[8:9], v3, s[52:55], s11 offen')
        for t in range(32):
            a(f'buffer_load_dwordx4 v[{40+4*t}:{43+4*t}], v2, s[56:59], s10 offen {WF}')
            if t < 31: a('s_add_u32 s10, s10, 6144')
        a('s_barrier')
        self.stamp(1)
        self.srd(48, 44, WS_SIZE)
        self.masks(4, 2)
        a('s_waitcnt vmcnt(32)')
        a('v_lshlrev_b32 v12, 16, v8'); a('v_and_b32 v13, 0xffff0000, v8')
        a('v_lshlrev_b32 v14, 16, v9'); a('v_and_b32 v15, 0xffff0000, v9')
        for r in range(4): a(f'v_mul_f32 v{16+r}, {f32(-1.4426950408889634)}, v{12+r}')
        for r in range(4): a(f'v_exp_f32 v{16+r}, v{16+r}')
        for r in range(4): a(f'v_add_f32 v{16+r}, 1.0, v{16+r}')
        for r in range(4): a(f'v_rcp_f32 v{16+r}, v{16+r}')
        for r in range(4): a(f'v_mul_f32 v{12+r}, v{12+r}, v{16+r}')
        for r in range(4): a(f'v_cvt_pk_bf16_f32 v{12+r}, v{12+r}, v{12+r}')
        a('v_lshlrev_b32 v2, 4, v0')
        a(f'ds_write_b128 v2, v[12:15] offset:{L_SC}')
        a('v_lshlrev_b32 v1, 7, v1')
        a('s_waitcnt lgkmcnt(0)')
        self.tag_setup()
        for half in range(2):
            for k in range(4): a(f'ds_read_b128 v[{8+4*k}:{11+4*k}], v1 offset:{L_SC+64*half+16*k}')
            a('s_waitcnt lgkmcnt(0)')
            for tt in range(16):
                t = 16*half + tt
                s = 24+4*(t&1)
                for r in range(4): a(f'v_and_b32 v{s+r}, v{8+tt}, v{4+r}')
                a(f's_waitcnt vmcnt({31-t})')
                acc = 32 + 4*(t&1)
                c = f'v[{acc}:{acc+3}]' if t > 1 else '0'
                a(f'v_mfma_f32_16x16x32_bf16 v[{acc}:{acc+3}], v[{s}:{s+3}], v[{40+4*t}:{43+4*t}], {c}')
        self.stamp(2)
        a('v_and_b32 v2, 7, v0')
        a('v_lshlrev_b32 v2, 5, v2')
        a('v_and_b32 v3, 16, v0')
        a('v_add_u32 v2, v2, v3')
        a('s_lshl_b32 s10, s8, 8')
        a('s_mul_i32 s11, s9, 12288')
        a('s_add_u32 s10, s10, s11')
        a(f's_add_u32 s10, s10, {WS_MOD}')
        a('v_mov_b32 v9, s47')
        for r in range(4): a(f'v_add_f32 v{32+r}, v{32+r}, v{36+r}')
        for r in range(4): a(f'v_mov_b32 v{36+r}, 0')
        for r in range(4): a(f'v_permlane32_swap_b32 v{32+r}, v{36+r}')
        for r in range(4): a(f'v_add_f32_dpp v{32+r}, v{36+r}, v{32+r} row_ror:8 row_mask:0xf bank_mask:0xf')
        for r in range(4): self.tagw(32+r, 9)
        a('s_mov_b64 exec, 0x00ff00ff')
        a('buffer_store_dwordx4 v[32:35], v2, s[48:51], s10 offen sc1')
        a('s_mov_b64 exec, -1')
        self.stamp(3)
        self.finish()
        a.label('L_S0m')
        a('s_waitcnt lgkmcnt(0)')
        a(f's_load_dword s46, s[44:45], {WS_EPOCH}')
        a('s_barrier')
        a('s_cmp_lt_u32 s5, 11')
        a('s_cbranch_scc0 L_S0fin')
        self.srd(48, 44, WS_SIZE)
        self.lds_spin(L_FLAG1)
        self.tag_setup()
        self.stamp(1)
        a('v_lshlrev_b32 v1, 4, v0')
        def iss():
            for rh in range(2):
                for i in range(8):
                    off = WS_MOD + rh*12288 + 4096 + i*1024
                    if i % 4 == 0: a(f's_mov_b32 s10, {off}')
                    a(f'buffer_load_dwordx4 v[{40+32*rh+4*i}:{43+32*rh+4*i}], v1, s[48:51], s10 offen offset:{(i%4)*1024} sc1')
        self.poll(iss, range(40, 104), 10, sleep=8)
        self.stamp(2)
        for r in range(32): a(f'v_add_f32 v{40+r}, v{40+r}, v{72+r}')
        for r in range(32): self.rnd(40+r, 40+r)
        for r in range(16, 24): a(f'v_add_f32 v{40+r}, 1.0, v{40+r}')
        for r in range(16, 24): self.rnd(40+r, 40+r)
        dst = [L_GA, L_SBV, L_C1, L_GB]
        for i in range(8):
            a(f'ds_write_b128 v1, v[{40+4*i}:{43+4*i}] offset:{dst[i//2] + (i%2)*1024}')
        a('s_waitcnt lgkmcnt(0)')
        a.label('L_S0fin')
        self.stamp(3)
        self.finish()
        a.label('L_S1')
        a('v_mov_b32 v2, 0'); a('v_mov_b32 v3, 0')
        a(f'ds_write_b64 v2, v[2:3] offset:{L_FLAGQ}')
        a('v_lshrrev_b32 v1, 4, v0')
        a('v_lshlrev_b32 v1, 17, v1')
        a('v_and_b32 v2, 15, v0')
        a('v_lshl_add_u32 v1, v2, 4, v1')
        a('s_lshl_b32 s10, s7, 19')
        a('s_lshl_b32 s11, s6, 8')
        a('s_add_u32 s10, s10, s11')
        a('v_lshlrev_b32 v2, 4, v0')
        a('v_lshlrev_b32 v3, 1, v0')
        a('s_lshl_b32 s11, s7, 7')
        a('s_waitcnt lgkmcnt(0)')
        self.srd(52, 16, 1024)
        self.srd(56, 22, 4194304)
        a(f's_load_dword s46, s[44:45], {WS_EPOCH}')
        a('buffer_load_dwordx4 v[8:11], v2, s[52:55], 0 offen')
        a('buffer_load_ushort v12, v3, s[52:55], s11 offen')
        for u in range(8):
            for hi in range(2):
                i = 2*u + hi
                a(f's_add_u32 s12, s10, {(8*hi+u)*8192}')
                a(f'buffer_load_dwordx4 v[{40+4*i}:{43+4*i}], v1, s[56:59], s12 offen {WF}')
        a('s_barrier')
        self.srd(48, 44, WS_SIZE)
        self.masks(4, 2)
        a('s_waitcnt vmcnt(16) lgkmcnt(0)')
        self.tag_setup()
        self.stamp(1)
        for r in range(4):
            a(f'v_lshlrev_b32 v{16+2*r}, 16, v{8+r}'); a(f'v_and_b32 v{17+2*r}, 0xffff0000, v{8+r}')
        a('v_add_f32 v14, v16, v17'); a('v_mul_f32 v15, v16, v16')
        a('v_fmac_f32 v15, v17, v17')
        for r in range(18, 24):
            a(f'v_add_f32 v14, v14, v{r}'); a(f'v_fmac_f32 v15, v{r}, v{r}')
        self.allred_row('v_add_f32', 14); self.allred_row('v_add_f32', 15)
        self.allred_rows('v_add_f32', 14, 16); self.allred_rows('v_add_f32', 15, 16)
        self.ln_scalars(14, 15, 16, 17, 18)
        a('v_lshlrev_b32 v12, 16, v12')
        a('v_sub_f32 v12, v12, v16')
        self.rnd(12, 12)
        a('v_mul_f32 v12, v12, v17')
        self.rnd(12, 12)
        a('v_lshlrev_b32 v2, 2, v0')
        a('s_lshl_b32 s10, s7, 8')
        a(f's_add_u32 s10, s10, {WS_MOD}')
        a(f's_add_u32 s11, s10, 12288')
        def iss1():
            a('buffer_load_dword v16, v2, s[48:51], s10 offen sc1')
            a('buffer_load_dword v17, v2, s[48:51], s11 offen sc1')
            a('buffer_load_dword v18, v2, s[48:51], s10 offen offset:2048 sc1')
            a('buffer_load_dword v19, v2, s[48:51], s11 offen offset:2048 sc1')
        self.poll(iss1, range(16, 20), 10, sleep=1)
        self.stamp(2)
        a('v_add_f32 v16, v16, v17'); a('v_add_f32 v18, v18, v19')
        self.rnd(16, 16); self.rnd(18, 18)
        a('v_add_f32 v18, 1.0, v18')
        self.rnd(18, 18)
        a('v_mul_f32 v12, v12, v18')
        self.rnd(12, 12)
        a('v_add_f32 v12, v12, v16')
        a('v_cvt_pk_bf16_f32 v12, v12, v12')
        a(f'ds_write_b32 v2, v12 offset:{L_H}')
        a('v_mov_b32 v13, 0'); a('v_mov_b32 v14, 1')
        a(f'ds_write_b32 v13, v14 offset:{L_FLAG1}')
        a('v_lshrrev_b32 v3, 3, v0')
        a('v_lshlrev_b32 v3, 5, v3')
        a(f'ds_read_b128 v[16:19], v3 offset:{L_H}')
        a(f'ds_read_b128 v[20:23], v3 offset:{L_H+16}')
        a('s_waitcnt lgkmcnt(0)')
        for u in range(8):
            s = 24+4*(u&1)
            for r in range(4): a(f'v_and_b32 v{s+r}, v{16+u}, v{4+r}')
            c0 = 'v[32:35]' if u else '0'
            c1 = 'v[36:39]' if u else '0'
            a(f'v_mfma_f32_16x16x32_bf16 v[32:35], v[{s}:{s+3}], v[{40+8*u}:{43+8*u}], {c0}')
            a(f'v_mfma_f32_16x16x32_bf16 v[36:39], v[{s}:{s+3}], v[{44+8*u}:{47+8*u}], {c1}')
        a('v_and_b32 v2, 15, v0')
        a('v_lshlrev_b32 v2, 5, v2')
        a('v_and_b32 v3, 16, v0')
        a('v_add_u32 v2, v2, v3')
        a('s_lshl_b32 s11, s6, 12')
        a(f's_add_u32 s11, s11, {WS_QP}')
        a('s_lshl_b32 s10, s7, 9')
        a('s_add_u32 s10, s10, s11')
        a('v_mov_b32 v9, s47')
        for r in range(4): a(f'v_mov_b32 v{24+r}, 0')
        for r in range(4): a(f'v_permlane32_swap_b32 v{36+r}, v{24+r}')
        for r in range(4): a(f'v_add_f32 v{32+r}, v{32+r}, v{24+r}')
        for r in range(4): self.tagw(32+r, 9)
        a('s_mov_b32 exec_hi, 0')
        a('buffer_store_dwordx4 v[32:35], v2, s[48:51], s10 offen sc1')
        a('s_mov_b64 exec, -1')
        self.stamp(3)
        a('v_lshlrev_b32 v1, 4, v0')
        def iss2():
            for k in range(4): a(f'buffer_load_dwordx4 v[{40+4*k}:{43+4*k}], v1, s[48:51], s11 offen offset:{1024*k} sc1')
        self.poll(iss2, range(40, 56), 10, sleep=1)
        self.stamp(4)
        X, Y = self.sum8(40)
        a(f'v_cvt_pk_bf16_f32 v12, v{X}, v{Y}')
        a('v_and_b32 v3, 31, v0')
        a('v_lshlrev_b32 v3, 3, v3')
        a('v_lshrrev_b32 v2, 5, v0')
        a('v_lshl_add_u32 v3, v2, 2, v3')
        a(f'ds_write_b32 v3, v12 offset:{L_Q}')
        a(f'ds_write_b32 v13, v14 offset:{L_FLAGQ}')
        a('s_waitcnt lgkmcnt(0)')
        self.stamp(5)
        self.finish()

    def dump(self):
        a = self.a
        a.label('L_dump')
        a('s_mov_b64 exec, -1')
        a('s_waitcnt lgkmcnt(0)')
        a('v_mov_b32 v5, 0')
        for k in range(10): a(f'v_writelane_b32 v5, s{80+2*k}, {k}')
        a('s_getreg_b32 s10, hwreg(HW_REG_XCC_ID)')
        a('v_writelane_b32 v5, s10, 10')
        a('v_writelane_b32 v5, s15, 11')
        a('s_mul_i32 s10, s2, 10')
        a('s_add_u32 s10, s10, s3')
        a('s_lshl_b32 s10, s10, 6')
        a('s_add_u32 s12, s44, 0x8000000')
        a('s_addc_u32 s13, s45, 0')
        a('s_and_b32 s13, s13, 0xffff')
        a('s_mov_b32 s14, 0x1000000')
        a('s_mov_b32 s15, 0x20000')
        a('v_lshlrev_b32 v6, 2, v0')
        a('s_mov_b64 exec, 0xffff')
        a('buffer_store_dword v5, v6, s[12:15], s10 offen')
        a('s_endpgm')

def header():
    ref = open('cdna_kernels/' + NAME + '.s.ref').read().split('\n')
    out = []
    for l in ref:
        if l.startswith('; @launch'): break
        out.append(l)
    return '\n'.join(out)

def emit(o):
    g = G(o); g.build()
    kn = NAME + '_kernel'
    s = header() + f'\n; @launch grid=(256,1,1) block=(640,1,1) lds={LDS_BYTES}\n'
    s += f'''.amdgcn_target "amdgcn-amd-amdhsa--gfx950"
.text
.globl {kn}
.p2align 8
.type {kn},@function
{kn}:
{g.a.text()}
.section .rodata,"a"
.p2align 6
.amdhsa_kernel {kn}
  .amdhsa_next_free_vgpr 168
  .amdhsa_next_free_sgpr 102
  .amdhsa_accum_offset 168
  .amdhsa_group_segment_fixed_size 0
  .amdhsa_kernarg_size 120
  .amdhsa_user_sgpr_count 2
  .amdhsa_user_sgpr_kernarg_segment_ptr 1
  .amdhsa_system_sgpr_workgroup_id_x 1
  .amdhsa_float_denorm_mode_32 3
.end_amdhsa_kernel
'''
    return s

def parser():
    p = argparse.ArgumentParser()
    p.add_argument('-o', default='k.s')
    p.add_argument('--stamps', action='store_true')
    p.add_argument('--kvflags', default='nt')
    p.add_argument('--wflags', default='nt')
    p.add_argument('--pattern', default='inter')
    p.add_argument('--rot', default='hash')
    p.add_argument('--wo_early', action='store_true')
    p.add_argument('--sleep2', type=int, default=2)
    p.add_argument('--sleep3', type=int, default=1)
    p.add_argument('--sleep4', type=int, default=1)
    p.add_argument('--meta', action='store_true')
    return p

META = """
.amdgpu_metadata
---
amdhsa.version: [1, 2]
amdhsa.kernels:
  - .name: {name}
    .symbol: {name}.kd
    .kernarg_segment_size: 120
    .kernarg_segment_align: 8
    .group_segment_fixed_size: 0
    .private_segment_fixed_size: 0
    .wavefront_size: 64
    .sgpr_count: 102
    .vgpr_count: 168
    .max_flat_workgroup_size: 640
    .args:
      - {{.name: kernargs, .size: 120, .offset: 0, .value_kind: by_value}}
...
.end_amdgpu_metadata
"""
if __name__ == '__main__':
    o = parser().parse_args()
    s = emit(o)
    if o.meta: s += META.format(name=NAME + '_kernel')
    open(o.o, 'w').write(s)
```

```python
import re

def _regs(tok):
    tok = tok.strip()
    tok = re.sub(r'^-|^abs\(|\)$|^\|', '', tok)
    tok = tok.strip('|')
    m = re.fullmatch(r'([vs])(\d+)', tok)
    if m: return {(m.group(1), int(m.group(2)))}
    m = re.fullmatch(r'([vs])\[(\d+):(\d+)\]', tok)
    if m: return {(m.group(1), i) for i in range(int(m.group(2)), int(m.group(3))+1)}
    if tok == 'vcc': return {('s', 106), ('s', 107)}
    if tok == 'vcc_lo': return {('s', 106)}
    if tok == 'vcc_hi': return {('s', 107)}
    if tok == 'exec': return {('s', 126), ('s', 127)}
    if tok == 'm0': return {('s', 124)}
    return set()

TRANS = ('v_exp_f32','v_log_f32','v_rcp_f32','v_rsq_f32','v_sqrt_f32','v_sin_f32','v_cos_f32')

class Ins:
    def __init__(self, text):
        self.text = text
        t = text.split(';')[0].strip()
        parts = t.split(None, 1)
        self.op = parts[0]
        rest = parts[1] if len(parts) > 1 else ''
        ops = [o.strip() for o in re.split(r',(?![^\[]*\])', rest)] if rest else []
        mods = ''
        if ops:
            last = ops[-1].split(None, 1)
            ops[-1] = last[0]
            mods = last[1] if len(last) > 1 else ''
        self.ops, self.mods = ops, mods
        op = self.op
        self.valu = op.startswith('v_') and not op.startswith('v_mfma')
        self.mfma = op.startswith('v_mfma')
        self.vmem = op.startswith(('buffer_', 'global_'))
        self.ds = op.startswith('ds_')
        self.dpp = op.endswith('_dpp') or bool(re.search(r'row_|quad_perm', mods))
        self.trans = op.replace('_e32','').replace('_e64','') in TRANS
        self.dot = op.startswith('v_dot')
        self.perml = op.startswith('v_permlane')
        self.rdlane = op.startswith(('v_readlane', 'v_readfirstlane'))
        self.wr, self.rd = set(), set()
        self.srcC = set(); self.srcAB = set(); self.dppsrc = set(); self.stdata = set()
        R = [_regs(o) for o in ops]
        if self.mfma:
            self.wr = R[0]; self.srcAB = R[1] | R[2]; self.srcC = R[3]; self.rd = self.srcAB | self.srcC
        elif self.valu:
            if op == 'v_nop': pass
            elif self.perml:
                self.wr = R[0] | R[1]; self.rd = R[0] | R[1]
            else:
                self.wr = set(R[0])
                for r in R[1:]: self.rd |= r
                if op.startswith(('v_fmac', 'v_dot2c', 'v_mac', 'v_writelane')): self.rd |= R[0]
                if op.startswith('v_cndmask') and len(ops) == 3: self.rd |= _regs('vcc')
                if self.dot:
                    if op.startswith('v_dot2c'):
                        self.srcC = R[0]; self.srcAB = R[1] | R[2]
                    else:
                        self.srcC = R[3]; self.srcAB = R[1] | R[2]
                if self.dpp: self.dppsrc = R[1]
        elif self.vmem:
            if 'load' in op:
                if 'lds' in mods.split():
                    for r in R: self.rd |= r
                else:
                    self.wr = R[0]
                    for r in R[1:]: self.rd |= r
            else:
                for r in R: self.rd |= r
                if op.startswith('buffer_store'): self.stdata = R[0]
                elif op.startswith('global_store'): self.stdata = R[1]
                if not re.search(r'x[34]$', op): self.stdata = set()
        elif self.ds:
            if op.startswith(('ds_read', 'ds_bpermute', 'ds_swizzle', 'ds_permute')):
                self.wr = R[0]
                for r in R[1:]: self.rd |= r
            else:
                for r in R: self.rd |= r
        self.states = 1
        if op == 's_nop': self.states = int(ops[0], 0) + 1

def need(p, c):
    n = 0
    vw = {r for r in p.wr if r[0] == 'v'}
    sw = {r for r in p.wr if r[0] == 's'}
    if p.valu:
        if c.valu and c.dpp and (vw & c.dppsrc): n = max(n, 2)
        if c.perml and (vw & c.rd): n = max(n, 2)
        if c.mfma and (vw & c.rd): n = max(n, 2)
        if p.trans and (c.valu or c.mfma) and (vw & c.rd): n = max(n, 1)
        if c.rdlane and (vw & c.rd): n = max(n, 1)
        if sw:
            if c.valu and (sw & c.rd): n = max(n, 4 if (c.rdlane or c.op.startswith('v_writelane')) else 2)
            if c.vmem and (sw & c.rd): n = max(n, 5)
        if p.dot:
            same = c.op.replace('_dpp','') == p.op.replace('_dpp','')
            if same:
                if vw & c.srcAB: n = max(n, 3)
            elif (vw & (c.rd | c.wr)): n = max(n, 3)
    if p.mfma:
        if c.mfma:
            if vw & c.srcAB: n = max(n, 8)
            if (vw & c.srcC) and vw != c.srcC: n = max(n, 6)
            if (vw & c.wr) and not (vw & c.srcC): n = max(n, 8)
        elif (c.valu or c.vmem or c.ds) and (vw & (c.rd | c.wr)): n = max(n, 8)
        if c.valu and (p.srcC & c.wr): n = max(n, 3)
    if p.stdata and (c.valu or c.vmem or c.ds or c.mfma) and (p.stdata & c.wr): n = max(n, 2)
    return n

def isize(c):
    op = c.op
    if c.vmem or c.ds or c.mfma or c.dpp: return 8
    if op.startswith(('s_load', 's_memrealtime', 's_memtime', 's_buffer')): return 8
    lit = False
    for o in c.ops:
        if re.fullmatch(r'-?(0x[0-9a-fA-F]+|\d+)', o):
            v = int(o, 0)
            if not (-16 <= v <= 64): lit = True
    if op.startswith('s_'):
        if op.startswith(('s_nop','s_waitcnt','s_branch','s_cbranch','s_barrier','s_sleep','s_endpgm','s_movk','s_setprio','s_getreg')): return 4
        return 8 if lit else 4
    vop12 = ('v_mov_b32','v_add_f32','v_sub_f32','v_mul_f32','v_max_f32','v_min_f32','v_and_b32','v_or_b32','v_xor_b32','v_lshlrev_b32','v_lshrrev_b32',
             'v_add_u32','v_fmac_f32','v_exp_f32','v_rcp_f32','v_sqrt_f32','v_readfirstlane_b32','v_permlane32_swap_b32','v_permlane16_swap_b32','v_cmp_ne_u32','v_cmp_eq_u32')
    if op in vop12 and not lit: return 4
    return 8

class Asm:
    hop_every = 0
    def hop(self):
        k = len(self.hops)
        self.hops.append(k)
        self.out.append(f'Lhop_{k}:')
        self.out.append(f'    s_cbranch_execz Lhopnext_{k}')
        self.hist.append(Ins('s_cbranch_execz x'))
        self.since = 4
    def __init__(self):
        self.hops = []; self.since = 0
        self.out = []
        self.hist = []
        self.nlab = 0
    def raw(self, s): self.out.append(s)
    def label(self, name):
        self.out.append(name + ':')
    def newlabel(self, base='L'):
        self.nlab += 1
        return f'{base}_{self.nlab}'
    def __call__(self, text):
        for line in text.strip().split('\n'):
            line = line.strip()
            if not line or line.startswith(';'):
                if line: self.out.append('    ' + line)
                continue
            if line.endswith(':') or line.startswith('.'):
                self.out.append(line); continue
            c = Ins(line)
            if self.hop_every:
                if self.since + isize(c) > self.hop_every: self.hop()
                self.since += isize(c)
            dist = 0; req = 0
            for p in reversed(self.hist):
                k = need(p, c) - dist
                req = max(req, k)
                dist += p.states
                if dist >= 12: break
            if req > 0:
                nop = Ins(f's_nop {req-1}')
                self.out.append(f'    s_nop {req-1}')
                self.hist.append(nop); self.since += 4
            self.out.append('    ' + line)
            self.hist.append(c)
            self.hist = self.hist[-16:]
            if c.op in ('s_branch', 's_endpgm', 's_setpc_b64'):
                self.hist = []
    def flush(self, n=8):
        self(f's_nop {n-1}')
    def text(self): return '\n'.join(self.out)
```

```python
import sys, argparse, re
from asmlib import Asm

NAME = 'adaLN_cond__mha_block_cached__mixer_channel_mlp__decode'
WS_EPOCH = 0
WS_MODW = 0x1000
WS_MOD = 0x5000
WS_QP  = 0x10000
WS_ST  = 0x50000
WS_OP  = 0x60000
WS_AP  = 0x80000
WS_ZP  = 0x90000
WS_B = 0x100000
WS_SIZE = 0x180000
L_FLAGQ = 0; L_FLAG1 = 4; L_CNTK = 8; L_CNTV = 12; L_REL = 16; L_MS = 32
L_Q = 64; L_H = 512; L_SC = 1024; L_P = 2048; L_ML = 4096
L_R2 = 4352; L_SA = 4608; L_SB2 = 4672; L_R3 = 4864
L_OP = 8192
L_GA = 16384; L_C1 = L_GA + 2048; L_SBV = L_GA + 4096; L_GB = L_GA + 6144
L_X1 = 24576
L_WO = 28672; L_W1 = L_WO + 16384; L_W2 = L_W1 + 16384
LDS_BYTES = L_W2 + 16384
LOG2E = 0x3fb8aa3b
SPIN_MAX = 200000
ALL = 'row_mask:0xf bank_mask:0xf'

def f32(x):
    import struct
    return '0x%08x' % struct.unpack('<I', struct.pack('<f', x))[0]

class G:
    def __init__(self, o):
        self.o = o
        self.a = Asm()
    def stamp(self, k):
        if self.o.stamps: self.a(f's_memrealtime s[{80+2*k}:{81+2*k}]')
    def srd(self, d, p, size):
        a = self.a
        a(f's_mov_b32 s{d}, s{p}')
        a(f's_and_b32 s{d+1}, s{p+1}, 0xffff')
        a(f's_mov_b32 s{d+2}, {size}')
        a(f's_mov_b32 s{d+3}, 0x20000')
    def tag_setup(self):
        a = self.a
        a('s_add_u32 s46, s46, 1')
        a('s_and_b32 s47, s46, 0xff')
    def rnd(self, d, s):
        self.a(f'v_cvt_pk_bf16_f32 v{d}, 0, v{s}')
    def setexec(self, lo, hi):
        a = self.a
        a(f's_mov_b32 exec_lo, {lo:#x}'); a(f's_mov_b32 exec_hi, {hi:#x}')
    def masks(self, m, t):
        a = self.a
        a(f'v_and_b32 v{t}, 1, v0')
        a(f'v_lshlrev_b32 v{t}, 4, v{t}')
        a(f'v_mov_b32 v{t+1}, 0xffff')
        a(f'v_lshlrev_b32 v{t}, v{t}, v{t+1}')
        a(f'v_bfe_u32 v{t+1}, v0, 1, 2')
        for r in range(4):
            a(f'v_cmp_eq_u32 vcc, {r}, v{t+1}')
            a(f'v_cndmask_b32 v{m+r}, 0, v{t}, vcc')
    def or_tree(self, rs, acc):
        a = self.a
        rs = list(rs)
        if len(rs) >= 6:
            acc2 = acc + 1
            h = len(rs)//2
            self.or_chain2(rs[:h], acc, rs[h:], acc2)
            a(f'v_or_b32 v{acc}, v{acc}, v{acc2}')
        else:
            self.or_chain2(rs, acc, [], None)
    def or_chain2(self, r1, a1, r2, a2):
        def steps(rs, acc):
            out = []
            if not rs: return out
            if len(rs) >= 3: out.append(f'v_or3_b32 v{acc}, v{rs[0]}, v{rs[1]}, v{rs[2]}'); rs = rs[3:]
            else: out.append(f'v_or_b32 v{acc}, v{rs[0]}, v{rs[1]}'); rs = rs[2:]
            while len(rs) >= 2:
                out.append(f'v_or3_b32 v{acc}, v{acc}, v{rs[0]}, v{rs[1]}'); rs = rs[2:]
            if rs: out.append(f'v_or_b32 v{acc}, v{acc}, v{rs[0]}')
            return out
        s1, s2 = steps(r1, a1), steps(r2, a2)
        for i in range(max(len(s1), len(s2))):
            if i < len(s1): self.a(s1[i])
            if i < len(s2): self.a(s2[i])
    def poll(self, issue, regs, acc, sleep=1, wide=False, dual=()):
        a = self.a
        top = a.newlabel('Lpoll'); retry = a.newlabel('Lretry'); done = a.newlabel('Ldone')
        a('s_mov_b32 s15, 0')
        a(f's_branch {top}')
        a.label(retry)
        a('s_add_u32 s15, s15, 1')
        a(f's_cmp_gt_u32 s15, {SPIN_MAX}')
        a(f's_cbranch_scc1 {done}')
        if sleep: a(f's_sleep {sleep}')
        if dual:
            a('s_and_b32 s14, s15, 3')
            a('s_cmp_eq_u32 s14, 3')
            a(f's_cselect_b32 s14, {WS_B}, 0')
            for r in dual:
                a(f's_andn2_b32 {r}, {r}, {WS_B}')
                a(f's_or_b32 {r}, {r}, s14')
        a.label(top)
        issue()
        a('s_waitcnt vmcnt(0)')
        for r in regs: a(f'v_xor_b32 v{r}, {"s46" if wide else "s47"}, v{r}')
        self.or_tree(regs, acc)
        if not wide: a(f'v_and_b32 v{acc}, 0xff, v{acc}')
        a(f'v_cmp_ne_u32 vcc, 0, v{acc}')
        a(f's_cbranch_vccnz {retry}')
        a.label(done)
    def tagw(self, r, vt):
        self.a(f'v_and_or_b32 v{r}, v{r}, s72, v{vt}')
    def allred_rows(self, op, r, t):
        a = self.a
        a(f'v_mov_b32 v{t}, v{r}')
        a(f'v_permlane16_swap_b32 v{r}, v{t}')
        a(f'{op} v{r}, v{r}, v{t}')
        a(f'v_mov_b32 v{t}, v{r}')
        a(f'v_permlane32_swap_b32 v{r}, v{t}')
        a(f'{op} v{r}, v{r}, v{t}')
    def allred_row(self, op, r, n=4):
        a = self.a
        for m in ('quad_perm:[1,0,3,2]', 'quad_perm:[2,3,0,1]', 'row_half_mirror', 'row_mirror')[:n]:
            a(f'{op}_dpp v{r}, v{r}, v{r} {m} {ALL}')
    def tree_add(self, regs_list):
        a = self.a
        L = [list(r) for r in regs_list]
        while any(len(r) > 1 for r in L):
            for i in range(0, max(len(r) for r in L) - 1, 2):
                for r in L:
                    if i + 1 < len(r): a(f'v_add_f32 v{r[i]}, v{r[i]}, v{r[i+1]}')
            L = [r[0::2] for r in L]
    def pair4(self, raw, dst):
        a = self.a
        for h in range(2):
            for k in range(4):
                a(f'v_perm_b32 v{dst+8*h+2*k}, v{raw+8*h+4+k}, v{raw+8*h+k}, s73')
                a(f'v_perm_b32 v{dst+8*h+2*k+1}, v{raw+8*h+4+k}, v{raw+8*h+k}, s74')
    def gemv8(self, P, pk, z):
        a = self.a
        for n in range(8): a(f'v_dot2c_f32_bf16_dpp v{z+n}, v{pk}, v{P+n} quad_perm:[0,0,2,2] {ALL}')
        for n in range(8): a(f'v_dot2c_f32_bf16_dpp v{z+n}, v{pk}, v{P+8+n} quad_perm:[1,1,3,3] {ALL}')
        for n in range(4): a(f'v_permlane32_swap_b32 v{z+n}, v{z+n+4}')
        for n in range(4): a(f'v_add_f32 v{z+n}, v{z+n}, v{z+n+4}')
        for n in range(2): a(f'v_permlane16_swap_b32 v{z+n}, v{z+n+2}')
        for n in range(2): a(f'v_add_f32 v{z+n}, v{z+n}, v{z+n+2}')
        a(f'v_add_f32_dpp v{z}, v{z}, v{z} row_ror:8 row_mask:0xf bank_mask:0x3')
        a(f'v_add_f32_dpp v{z}, v{z+1}, v{z+1} row_ror:8 row_mask:0xf bank_mask:0xc')
        a(f'v_add_f32_dpp v{z}, v{z}, v{z} row_shl:4 row_mask:0xf bank_mask:0x5')
        a(f'v_add_f32_dpp v{z}, v{z}, v{z} quad_perm:[2,3,0,1] {ALL}')
    def ln_scalars(self, S1, S2, m, rs, t):
        a = self.a
        a(f'v_mul_f32 v{S1}, {f32(1/512)}, v{S1}')
        a(f'v_mul_f32 v{S2}, {f32(1/512)}, v{S2}')
        a(f'v_fma_f32 v{S2}, -v{S1}, v{S1}, v{S2}')
        self.rnd(m, S1)
        a(f'v_max_f32 v{S2}, 0, v{S2}')
        self.rnd(t, S2)
        a(f'v_add_f32 v{t}, {f32(1e-5)}, v{t}')
        self.rnd(t, t)
        a(f'v_sqrt_f32 v{t}, v{t}')
        self.rnd(t, t)
        a(f'v_rcp_f32 v{rs}, v{t}')
    def lds_spin(self, off, extra=None, addr=None):
        a = self.a
        top = a.newlabel('Lspin'); done = a.newlabel('Lspd')
        a('s_mov_b32 s15, 0')
        if addr is None:
            a('v_mov_b32 v2, 0'); addr = 2
        a.label(top)
        a(f'ds_read_b32 v3, v{addr} offset:{off}')
        if extra: extra()
        a('s_waitcnt lgkmcnt(0)')
        a('v_readfirstlane_b32 s14, v3')
        a('s_add_u32 s15, s15, 1')
        a('s_cmp_lg_u32 s14, 0')
        a(f's_cbranch_scc1 {done}')
        a(f's_cmp_gt_u32 s15, {SPIN_MAX*8}')
        a(f's_cbranch_scc1 {done}')
        a('s_sleep 1')
        a(f's_branch {top}')
        a.label(done)
    def finish(self):
        a = self.a
        if self.o.stamps: a('s_branch L_dump')
        else: a('s_endpgm')

    def build(self):
        a, o = self.a, self.o
        NT = o.kvflags
        D = o.depth
        a.label('L_entry')
        a('s_cmp_ge_u32 s2, 256')
        a('s_cbranch_scc1 L_end')
        a('s_load_dwordx16 s[16:31], s[0:1], 0')
        a('s_load_dwordx8 s[32:39], s[0:1], 64')
        a('s_load_dwordx4 s[40:43], s[0:1], 96')
        a('s_load_dwordx2 s[44:45], s[0:1], 112')
        if o.stamps:
            for k in range(10): a(f's_mov_b64 s[{80+2*k}:{81+2*k}], 0')
        self.stamp(0)
        a('v_lshrrev_b32 v1, 6, v0')
        a('v_and_b32 v0, 63, v0')
        a('v_readfirstlane_b32 s3, v1')
        a('s_and_b32 s4, s2, 7')
        a('s_lshr_b32 s5, s2, 3')
        a('s_and_b32 s6, s5, 3')
        a('s_lshl_b32 s8, s4, 2')
        a('s_add_u32 s6, s6, s8')
        a('s_lshr_b32 s7, s5, 2')
        a('s_mov_b32 s72, 0xffffff00')
        a('s_cmp_eq_u32 s3, 0')
        a('s_cbranch_scc1 L_S0')
        a('s_cmp_eq_u32 s3, 1')
        a('s_cbranch_scc1 L_S1')
        a('s_sub_u32 s9, s3, 2')
        a('s_and_b32 s9, s9, 3')
        a('s_lshl_b32 s10, s6, 20')
        a(f's_lshl_b32 s11, s7, {17 if o.pattern=="inter" else 12}')
        a('s_add_u32 s10, s10, s11')
        a('s_lshl_b32 s11, s9, 10')
        a('s_add_u32 s10, s10, s11')
        a('v_lshlrev_b32 v1, 4, v0')
        a('v_add_u32 v1, s10, v1')
        step = 4096 if o.pattern == 'inter' else 32768
        if o.rot == 'hash':
            a('s_mul_i32 s12, s2, 0x9E3779B1'); a('s_lshr_b32 s12, s12, 27')
        elif o.rot == 'h': a('s_mov_b32 s12, s6')
        else: a('s_mov_b32 s12, 0')
        a(f's_mul_i32 s12, s12, {step}')
        a(f's_mov_b32 s13, {step}')
        a(f's_mov_b32 s79, {step*32-1}')
        a('s_mov_b32 s54, 33554432')
        a('s_mov_b32 s55, 0x20000')
        a('s_lshl_b32 s10, s9, 2')
        a('v_mov_b32 v4, s10')
        a('v_mov_b32 v5, 0')
        a('v_mov_b32 v6, 1')
        a('s_cmp_ge_u32 s3, 6')
        a('s_cbranch_scc1 L_Vpre')
        a('s_waitcnt lgkmcnt(0)')
        a('s_mov_b32 s52, s18')
        a('s_and_b32 s53, s19, 0xffff')
        a.label('L_kv0')
        a(f's_load_dword s46, s[44:45], {WS_EPOCH}')
        for t in range(32):
            if D and t >= D: a(f's_waitcnt vmcnt({D-1})')
            a(f'buffer_load_dwordx4 v[{40+4*t}:{43+4*t}], v1, s[52:55], s12 offen {NT}')
            if t < 31:
                a('s_add_u32 s12, s12, s13')
                a('s_and_b32 s12, s12, s79')
            if t == o.ms:
                a(f'ds_write_b32 v5, v6 offset:{L_MS}')
            if t == (D-1 if D else 7):
                a('s_cmp_ge_u32 s3, 6')
                a('s_cbranch_scc1 L_kv1')
                a('s_barrier')
                a.label('L_kv1')
        self.stamp(1)
        self.srd(48, 44, WS_SIZE)
        a('s_waitcnt lgkmcnt(0)')
        self.tag_setup()
        a('s_cmp_ge_u32 s3, 6')
        a('s_cbranch_scc1 L_V')
        a('s_branch L_K')
        a.label('L_Vpre')
        if o.warm:
            a('s_cmp_ge_u32 s9, 2')
            a('s_cbranch_scc1 L_nopf')
            a('s_getpc_b64 s[10:11]')
            a.label('L_pc')
            a('s_sub_u32 s10, s10, L_pc-L_entry')
            a('s_subb_u32 s11, s11, 0')
            a('v_lshlrev_b32 v2, 7, v0')
            a('s_lshl_b32 s14, s9, 13')
            a('v_add_u32 v2, s14, v2')
            a('v_min_u32 v2, L_end-L_entry, v2')
            a('global_load_dword v3, v2, s[10:11]')
            a.label('L_nopf')
        a('s_barrier')
        a('s_waitcnt vmcnt(0) lgkmcnt(0)')
        a('s_mov_b32 s52, s20')
        a('s_and_b32 s53, s21, 0xffff')
        if o.warm:
            a('s_mov_b64 exec, 0')
            for w in range(3):
                a(f's_cmp_eq_u32 s9, {w}')
                a(f's_cbranch_scc1 Lchain_{w}')
            a('s_branch Lchain_3')
            a.label('L_warmdone')
            a('s_mov_b64 exec, -1')
        self.stamp(5)
        if D: self.lds_spin(L_REL, addr=4)
        self.stamp(6)
        a('s_branch L_kv0')
        if o.warm: a.hop_every = o.hop
        self.s1path()
        self.s0path()
        self.kpath()
        self.vpath()
        a.hop_every = 0
        if o.stamps: self.dump()
        a.label('L_end')
        a('s_endpgm')
        if o.warm:
            n = len(a.hops); txt = a.text()
            bounds = [round(n*i/4) for i in range(5)]
            for w in range(4):
                txt = txt.replace(f'Lchain_{w}', f'Lhop_{bounds[w]}')
            for k in range(n-1, -1, -1):
                tgt = 'L_warmdone' if (k+1) in bounds[1:] else f'Lhop_{k+1}'
                txt = re.sub(rf'Lhopnext_{k}\b', tgt, txt)
            a.out = txt.split('\n')

    def kpath(self):
        a, o = self.a, self.o
        D = o.depth
        a.label('L_K')
        if D:
            a(f's_waitcnt vmcnt({o.rel})')
            a(f'ds_write_b32 v4, v6 offset:{L_REL}')
        a('s_mov_b32 s73, 0x05040100')
        a('s_mov_b32 s74, 0x07060302')
        a('v_mov_b32 v9, s47')
        a('s_lshl_b32 s10, s9, 6')
        a('v_add_u32 v17, s10, v0')
        a('v_and_b32 v15, 1, v0')
        a('v_lshlrev_b32 v15, 4, v15')
        a('s_mul_i32 s76, s4, 11')
        a('s_add_u32 s76, s76, s5')
        a('s_cmp_lt_u32 s5, 11')
        a('s_cselect_b32 s76, s76, 100')
        a('s_cmp_lt_u32 s76, 86')
        a('s_cselect_b32 s77, 1, 0')
        a('v_lshlrev_b32 v20, 2, v0')
        a('v_lshlrev_b32 v21, 3, v0')
        a('v_and_b32 v22, 7, v0')
        a('v_lshlrev_b32 v22, 4, v22')
        a('v_lshlrev_b32 v23, 3, v17')
        a('v_lshrrev_b32 v11, 3, v0')
        a('v_lshlrev_b32 v11, 4, v11')
        a('v_lshl_add_u32 v11, v15, 3, v11')
        a('s_lshl_b32 s10, s9, 2')
        a('v_add_u32 v16, s10, v11')
        a('v_lshrrev_b32 v13, 3, v0')
        a('v_lshlrev_b32 v13, 6, v13')
        a('v_and_b32 v14, 3, v0')
        a('v_lshl_add_u32 v13, v14, 3, v13')
        a('v_and_b32 v14, 4, v0')
        a('v_add_u32 v13, v13, v14')
        a('s_lshl_b32 s10, s9, 9')
        a('v_add_u32 v13, s10, v13')
        a('v_and_b32 v8, 15, v0')
        a('v_lshlrev_b32 v8, 4, v8')
        self.lds_spin(L_FLAGQ, lambda: a(f'ds_read_b128 v[4:7], v8 offset:{L_Q}'))
        self.stamp(2)
        a('s_waitcnt vmcnt(0)')
        for blk in range(4):
            ts = range(8*blk, 8*blk+8)
            for t in ts: a(f'v_dot2_f32_bf16 v{40+4*t}, v{40+4*t}, v4, 0')
            for j in range(1, 4):
                for t in ts: a(f'v_dot2_f32_bf16 v{40+4*t}, v{40+4*t+j}, v{4+j}, v{40+4*t}')
            R = lambda t: 40+4*t
            for t in ts[0::2]: a(f'v_add_f32_dpp v{R(t)}, v{R(t)}, v{R(t)} row_ror:8 row_mask:0xf bank_mask:0x3')
            for t in ts[0::2]: a(f'v_add_f32_dpp v{R(t)}, v{R(t+1)}, v{R(t+1)} row_ror:8 row_mask:0xf bank_mask:0xc')
            for t in ts[0::4]: a(f'v_add_f32_dpp v{R(t)}, v{R(t)}, v{R(t)} row_shl:4 row_mask:0xf bank_mask:0x5')
            for t in ts[0::4]: a(f'v_add_f32_dpp v{R(t)}, v{R(t+2)}, v{R(t+2)} row_shr:4 row_mask:0xf bank_mask:0xa')
        U = [40+16*u for u in range(8)]
        for m in ('quad_perm:[1,0,3,2]', 'quad_perm:[2,3,0,1]'):
            for r in U: a(f'v_add_f32_dpp v{r}, v{r}, v{r} {m} {ALL}')
        A, B = 24, 25
        for q, pat in ((1, 0x22222222), (2, 0x44444444), (3, 0x88888888)):
            a(f's_mov_b32 s10, {pat:#x}'); a(f's_mov_b32 s11, {pat:#x}')
            a(f'v_cndmask_b32 v{A}, v{U[0] if q==1 else A}, v{U[q]}, s[10:11]')
            a(f'v_cndmask_b32 v{B}, v{U[4] if q==1 else B}, v{U[4+q]}, s[10:11]')
        for r in (A, B): self.rnd(r, r)
        for r in (A, B): a(f'v_mul_f32 v{r}, {f32(128**-0.5)}, v{r}')
        for r in (A, B): self.rnd(r, r)
        a(f'v_max_f32 v10, v{A}, v{B}')
        self.allred_row('v_max_f32', 10)
        self.allred_rows('v_max_f32', 10, 12)
        for r in (A, B): a(f'v_sub_f32 v{r}, v{r}, v10')
        for r in (A, B): a(f'v_mul_f32 v{r}, {LOG2E:#x}, v{r}')
        for r in (A, B): a(f'v_exp_f32 v{r}, v{r}')
        a(f'v_add_f32 v11, v{A}, v{B}')
        for r in (A, B): a(f'v_cvt_pk_bf16_f32 v{r}, v{r}, v{r}')
        a(f'ds_write_b32 v13, v{A} offset:{L_P}')
        a(f'ds_write_b32 v13, v{B} offset:{L_P+32}')
        self.allred_row('v_add_f32', 11)
        self.allred_rows('v_add_f32', 11, 12)
        a('s_lshl_b32 s10, s9, 3')
        a('v_mov_b32 v12, s10')
        a('v_mov_b32 v13, 0')
        a('v_mov_b32 v14, 1')
        a('s_mov_b64 exec, 1')
        a(f'ds_write_b64 v12, v[10:11] offset:{L_ML}')
        a(f'ds_add_rtn_u32 v14, v13, v14 offset:{L_CNTK}')
        a(f'ds_read_b128 v[24:27], v13 offset:{L_ML}')
        a(f'ds_read_b128 v[28:31], v13 offset:{L_ML+16}')
        a('s_waitcnt lgkmcnt(0)')
        a('v_readfirstlane_b32 s10, v14')
        a('s_cmp_lg_u32 s10, 3')
        a('s_cbranch_scc1 L_nost')
        a('v_max3_f32 v10, v24, v26, v28')
        a('v_max_f32 v10, v10, v30')
        for r in (24, 26, 28, 30): a(f'v_sub_f32 v{r}, v{r}, v10')
        for r in (24, 26, 28, 30): a(f'v_mul_f32 v{r}, {LOG2E:#x}, v{r}')
        for r in (24, 26, 28, 30): a(f'v_exp_f32 v{r}, v{r}')
        a('v_mul_f32 v11, v24, v25')
        for r in (26, 28, 30): a(f'v_fmac_f32 v11, v{r}, v{r+1}')
        self.tagw(10, 9); self.tagw(11, 9)
        a('s_lshl_b32 s10, s6, 7')
        a('s_lshl_b32 s11, s7, 4')
        a('s_add_u32 s10, s10, s11')
        a(f's_add_u32 s10, s10, {WS_ST}')
        a('buffer_store_dwordx2 v[10:11], v13, s[48:51], s10 offen')
        a(f's_add_u32 s10, s10, {WS_B}')
        a('buffer_store_dwordx2 v[10:11], v13, s[48:51], s10 offen sc1')
        a.label('L_nost')
        a('s_mov_b64 exec, -1')
        self.stamp(3)
        self.srd(68, 16, 1024)
        a('v_lshlrev_b32 v24, 2, v17')
        a('buffer_load_dword v24, v24, s[68:71], 0 offen')
        self.srd(68, 30, 2752)
        a('v_and_b32 v25, 15, v0')
        a('v_lshlrev_b32 v25, 1, v25')
        a('s_lshl_b32 s10, s76, 5')
        a('buffer_load_ushort v25, v25, s[68:71], s10 offen')
        self.srd(68, 34, 1024)
        a('s_lshl_b32 s78, s5, 6')
        a('s_lshl_b32 s10, s4, 3')
        a('s_add_u32 s78, s78, s10')
        a('s_and_b32 s78, s78, 511')
        a('v_lshrrev_b32 v26, 4, v0')
        a('v_lshrrev_b32 v27, 2, v15')
        a('v_add3_u32 v26, s78, v26, v27')
        a('v_lshlrev_b32 v27, 1, v26')
        a('buffer_load_ushort v28, v27, s[68:71], 0 offen')
        a('v_lshlrev_b32 v26, 2, v26')
        a('s_lshl_b32 s10, s4, 2')
        a('s_add_u32 s10, s10, s9')
        a('s_lshl_b32 s79, s10, 12')
        a(f's_add_u32 s79, s79, {WS_OP}')
        a('s_lshl_b32 s10, s10, 7')
        a(f's_add_u32 s10, s10, {WS_ST}')
        self.poll(lambda: a('buffer_load_dwordx2 v[152:153], v22, s[48:51], s10 offen sc1'), (152, 153), 10, sleep=2, dual=('s10',))
        a('v_mov_b32 v10, v152')
        self.allred_row('v_max_f32', 10, 3)
        a('v_sub_f32 v152, v152, v10')
        a(f'v_mul_f32 v152, {LOG2E:#x}, v152')
        a('v_exp_f32 v152, v152')
        a('v_mul_f32 v10, v152, v153')
        self.allred_row('v_add_f32', 10, 3)
        a('v_rcp_f32 v10, v10')
        a('v_mul_f32 v39, v152, v10')
        self.stamp(4)
        a('s_barrier')
        a('v_lshlrev_b32 v18, 4, v0')
        a('s_lshl_b32 s10, s9, 12')
        a('v_add_u32 v19, s10, v18')
        for i in range(4): a(f'ds_read_b128 v[{40+4*i}:{43+4*i}], v19 offset:{L_WO+1024*i}')
        a(f'ds_read_b64 v[30:31], v23 offset:{L_GA}')
        a(f'ds_read_b64 v[32:33], v23 offset:{L_C1}')
        a(f'ds_read_b64 v[34:35], v23 offset:{L_SBV}')
        a(f'ds_read_b32 v29, v26 offset:{L_GB}')
        a('v_lshlrev_b32 v36, 16, v24')
        a('v_and_b32 v37, 0xffff0000, v24')
        a('v_lshlrev_b32 v25, 16, v25')
        a('v_lshlrev_b32 v28, 16, v28')
        a('s_waitcnt vmcnt(0) lgkmcnt(0)')
        a('s_cmp_eq_u32 s77, 0')
        a('s_cbranch_scc1 L_nord')
        for i in range(4): a(f'ds_read_b128 v[{72+4*i}:{75+4*i}], v19 offset:{L_W1+1024*i}')
        a('s_lshl_b32 s10, s9, 8')
        a(f's_add_u32 s10, s10, {L_W2}')
        a('v_add_u32 v19, s10, v20')
        for f in range(8): a(f'ds_read2st64_b32 v[{104+2*f}:{105+2*f}], v19 offset0:{8*f} offset1:{8*f+4}')
        a.label('L_nord')
        self.pair4(40, 56)
        a('s_cmp_eq_u32 s77, 0')
        a('s_cbranch_scc1 L_nopair')
        a('s_waitcnt lgkmcnt(0)')
        self.pair4(72, 88)
        for k in range(8):
            a(f'v_perm_b32 v{120+k}, v{105+2*k}, v{104+2*k}, s73')
            a(f'v_perm_b32 v{128+k}, v{105+2*k}, v{104+2*k}, s74')
        a.label('L_nopair')
        for r in range(40, 56): a(f'v_mov_b32 v{r}, 0')
        for r in range(72, 76): a(f'v_mov_b32 v{r}, 0')
        a('s_lshr_b32 s10, s5, 3')
        a('s_lshl_b32 s10, s10, 12')
        a('s_lshl_b32 s11, s4, 9')
        a('s_add_u32 s10, s10, s11')
        a('s_and_b32 s11, s5, 7')
        a('s_lshl_b32 s11, s11, 6')
        a('s_add_u32 s10, s10, s11')
        a(f's_add_u32 s75, s10, {WS_AP}')
        def iss(base):
            def f():
                for s in range(8): a(f'buffer_load_dwordx2 v[{136+2*s}:{137+2*s}], v21, s[48:51], {base} offen offset:{512*s} sc1')
            return f
        self.stamp(5)
        self.poll(iss('s79'), range(136, 152), 10, sleep=o.sleep2, dual=('s79',))
        self.stamp(6)
        for d in range(2): a(f'v_mul_f32_dpp v{156+d}, v39, v{136+d} row_newbcast:0 {ALL}')
        for d in range(2): a(f'v_mul_f32_dpp v{158+d}, v39, v{138+d} row_newbcast:1 {ALL}')
        for s in range(2, 8):
            for d in range(2): a(f'v_fmac_f32_dpp v{156+2*(s&1)+d}, v39, v{136+2*s+d} row_newbcast:{s} {ALL}')
        a('v_add_f32 v156, v156, v158'); a('v_add_f32 v157, v157, v159')
        a('v_cvt_pk_bf16_f32 v10, v156, v157')
        self.gemv8(56, 10, 40)
        self.setexec(0x03030303, 0x03030303)
        a(f'ds_write_b32 v16, v40 offset:{L_R2}')
        a('s_mov_b64 exec, -1')
        a('s_waitcnt lgkmcnt(0)')
        a('s_barrier')
        a('s_cmp_lg_u32 s9, 0')
        a('s_cbranch_scc1 L_t2done')
        a('s_mov_b64 exec, 0xffff')
        a(f'ds_read_b128 v[40:43], v18 offset:{L_R2}')
        a('s_waitcnt lgkmcnt(0)')
        a('v_add_f32 v40, v40, v41')
        a('v_add_f32 v42, v42, v43')
        a('v_add_f32 v40, v40, v42')
        self.tagw(40, 9)
        a('buffer_store_dword v40, v20, s[48:51], s75 offen sc1')
        a('s_mov_b64 exec, -1')
        a.label('L_t2done')
        a('s_cmp_eq_u32 s77, 0')
        a('s_cbranch_scc1 L_fin')
        a('s_lshl_b32 s79, s9, 12')
        a(f's_add_u32 s79, s79, {WS_AP}')
        a('v_lshrrev_b32 v12, 5, v0')
        a('v_lshlrev_b32 v12, 4, v12')
        a('s_lshl_b32 s10, s9, 2')
        a('v_add_u32 v12, s10, v12')
        a('v_mov_b32 v13, 0')
        a('v_and_b32 v14, 15, v0')
        a('v_lshlrev_b32 v14, 4, v14')
        a('s_lshl_b32 s75, s76, 11')
        a('s_lshl_b32 s11, s9, 9')
        a('s_add_u32 s75, s75, s11')
        a(f's_add_u32 s75, s75, {WS_ZP}')
        if o.ack3:
            a('s_waitcnt vmcnt(0)')
            a('s_barrier')
        self.poll(iss('s79'), range(136, 152), 10, sleep=o.sleep3)
        self.stamp(7)
        X, Y = 136, 137
        self.tree_add([range(136, 152, 2), range(137, 152, 2)])
        for r in (X, Y): self.rnd(r, r)
        a(f'v_mul_f32 v{X}, v30, v{X}'); a(f'v_mul_f32 v{Y}, v31, v{Y}')
        for r in (X, Y): self.rnd(r, r)
        a(f'v_add_f32 v{X}, v36, v{X}'); a(f'v_add_f32 v{Y}, v37, v{Y}')
        for r in (X, Y): self.rnd(r, r)
        a(f'ds_write_b64 v23, v[{X}:{Y}] offset:{L_X1}')
        def ln(off):
            a(f'v_add_f32 v40, v{X}, v{Y}')
            a(f'v_mul_f32 v41, v{X}, v{X}')
            a(f'v_fmac_f32 v41, v{Y}, v{Y}')
            a('v_permlane32_swap_b32 v40, v41')
            a('v_add_f32 v40, v40, v41')
            self.allred_row('v_add_f32', 40)
            a('v_mov_b32 v41, v40')
            a('v_permlane16_swap_b32 v40, v41')
            a('v_add_f32 v40, v40, v41')
            self.setexec(1, 1)
            a(f'ds_write_b32 v12, v40 offset:{off}')
            a('s_mov_b64 exec, -1')
            a('s_waitcnt lgkmcnt(0)')
            a('s_barrier')
            a(f'ds_read_b128 v[40:43], v13 offset:{off}')
            a(f'ds_read_b128 v[44:47], v13 offset:{off+16}')
            a('s_waitcnt lgkmcnt(0)')
            self.tree_add([range(40, 44), range(44, 48)])
            self.ln_scalars(40, 44, 41, 42, 43)
            for r in (X, Y): a(f'v_sub_f32 v{r}, v{r}, v41')
            for r in (X, Y): self.rnd(r, r)
            for r in (X, Y): a(f'v_mul_f32 v{r}, v{r}, v42')
        ln(L_SA)
        for r in (X, Y): self.rnd(r, r)
        a(f'v_mul_f32 v{X}, v32, v{X}'); a(f'v_mul_f32 v{Y}, v33, v{Y}')
        for r in (X, Y): self.rnd(r, r)
        a(f'v_add_f32 v{X}, v34, v{X}'); a(f'v_add_f32 v{Y}, v35, v{Y}')
        for r in (X, Y): self.rnd(r, r)
        ln(L_SB2)
        a(f'v_cvt_pk_bf16_f32 v10, v{X}, v{Y}')
        self.gemv8(88, 10, 48)
        self.setexec(0x03030303, 0x03030303)
        a(f'ds_write_b32 v16, v48 offset:{L_R3}')
        a('s_mov_b64 exec, -1')
        a('s_waitcnt lgkmcnt(0)')
        a('s_barrier')
        a(f'ds_read_b128 v[40:43], v14 offset:{L_R3}')
        a(f'ds_read_b32 v38, v26 offset:{L_X1}')
        a('s_waitcnt lgkmcnt(1)')
        a('v_add_f32 v40, v40, v41')
        a('v_add_f32 v42, v42, v43')
        a('v_add_f32 v40, v40, v42')
        self.rnd(40, 40)
        a('v_add_f32 v40, v40, v25')
        self.rnd(40, 40)
        k0 = 0.7978845608028654; k1 = 0.044715
        c1 = -2*k0*1.4426950408889634
        a('v_mul_f32 v41, v40, v40')
        a(f'v_mov_b32 v42, {f32(c1)}')
        a(f'v_fmac_f32 v42, {f32(c1*k1)}, v41')
        a('v_mul_f32 v41, v42, v40')
        a('v_exp_f32 v41, v41')
        a('v_add_f32 v41, 1.0, v41')
        a('v_rcp_f32 v41, v41')
        a('v_mul_f32 v40, v40, v41')
        a(f'v_mov_b32_dpp v41, v40 quad_perm:[1,0,3,2] {ALL}')
        a('v_cvt_pk_bf16_f32 v40, v40, v41')
        for k in range(8):
            a(f'v_dot2c_f32_bf16_dpp v{72+2*(k&1)}, v40, v{120+k} row_newbcast:{2*k} {ALL}')
            a(f'v_dot2c_f32_bf16_dpp v{73+2*(k&1)}, v40, v{128+k} row_newbcast:{2*k} {ALL}')
        a('v_add_f32 v72, v72, v74')
        a('v_add_f32 v73, v73, v75')
        self.tagw(72, 9); self.tagw(73, 9)
        a('buffer_store_dwordx2 v[72:73], v21, s[48:51], s75 offen sc1')
        self.stamp(8)
        a('s_cmp_ge_u32 s5, 8')
        a('s_cbranch_scc1 L_fin')
        a('s_cmp_lg_u32 s9, 0')
        a('s_cbranch_scc1 L_fin')
        a('v_lshrrev_b32 v12, 1, v0')
        a('v_lshl_add_u32 v12, v12, 11, v15')
        a('s_lshl_b32 s10, s78, 2')
        a(f's_add_u32 s10, s10, {WS_ZP}')
        a(f's_add_u32 s11, s10, {32*2048}')
        a(f's_add_u32 s12, s10, {64*2048}')
        self.srd(68, 40, 1024)
        def iss4():
            a('buffer_load_dwordx4 v[136:139], v12, s[48:51], s10 offen sc1')
            a('buffer_load_dwordx4 v[140:143], v12, s[48:51], s11 offen sc1')
            for r in range(144, 148): a(f'v_mov_b32 v{r}, v9')
            a('s_mov_b32 exec_hi, 0xfff')
            a('buffer_load_dwordx4 v[144:147], v12, s[48:51], s12 offen sc1')
            a('s_mov_b32 exec_hi, -1')
        if o.ack4: a('s_waitcnt vmcnt(0)')
        self.poll(iss4, range(136, 148), 10, sleep=o.sleep4)
        for d in range(4): a(f'v_add_f32 v{136+d}, v{136+d}, v{140+d}')
        for d in range(4): a(f'v_add_f32 v{136+d}, v{136+d}, v{144+d}')
        a('v_permlane32_swap_b32 v136, v138')
        a('v_permlane32_swap_b32 v137, v139')
        a('v_add_f32 v136, v136, v138')
        a('v_add_f32 v137, v137, v139')
        a('v_permlane16_swap_b32 v136, v137')
        a('v_add_f32 v136, v136, v137')
        for m in ('row_ror:8', 'row_ror:4', 'quad_perm:[2,3,0,1]'):
            a(f'v_add_f32_dpp v136, v136, v136 {m} {ALL}')
        a('s_waitcnt lgkmcnt(0)')
        self.rnd(136, 136)
        a('v_add_f32 v136, v136, v28')
        self.rnd(136, 136)
        a('v_mul_f32 v136, v136, v29')
        self.rnd(136, 136)
        a('v_add_f32 v136, v136, v38')
        a('v_cvt_pk_bf16_f32 v136, v136, v136')
        self.setexec(0x00030003, 0x00030003)
        a('buffer_store_short v136, v27, s[68:71], 0 offen')
        a('s_cmp_lg_u32 s2, 0')
        a('s_cbranch_scc1 L_fin')
        a('s_mov_b64 exec, 1')
        a('v_mov_b32 v12, 0')
        a('v_mov_b32 v13, s46')
        a(f'buffer_store_dword v13, v12, s[48:51], 0 offen offset:{WS_EPOCH}')
        a.label('L_fin')
        self.stamp(9)
        self.finish()

    def vpath(self):
        a, o = self.a, self.o
        a.label('L_V')
        self.masks(4, 2)
        a('v_lshrrev_b32 v1, 3, v0')
        a('v_lshlrev_b32 v1, 6, v1')
        a('s_lshl_b32 s10, s9, 9')
        a('v_add_u32 v1, s10, v1')
        a('s_lshl_b32 s10, s9, 3')
        a('v_mov_b32 v2, s10')
        a('v_mov_b32 v3, 0')
        a('s_barrier')
        self.stamp(2)
        a(f'ds_read_b128 v[24:27], v3 offset:{L_ML}')
        a(f'ds_read_b128 v[28:31], v3 offset:{L_ML+16}')
        a(f'ds_read_b32 v2, v2 offset:{L_ML}')
        for k in range(4): a(f'ds_read_b128 v[{8+4*k}:{11+4*k}], v1 offset:{L_P+16*k}')
        a('v_and_b32 v1, 15, v0')
        a('v_lshlrev_b32 v1, 5, v1')
        a('v_and_b32 v3, 16, v0')
        a('v_add_u32 v1, v1, v3')
        a('v_and_b32 v3, 32, v0')
        a('v_lshl_add_u32 v1, v3, 4, v1')
        a('s_lshl_b32 s10, s9, 10')
        a('v_add_u32 v1, s10, v1')
        a('s_lshl_b32 s12, s6, 12')
        a('s_lshl_b32 s11, s7, 9')
        a('s_add_u32 s12, s12, s11')
        a(f's_add_u32 s12, s12, {WS_OP}')
        a('s_waitcnt lgkmcnt(0)')
        a('v_max3_f32 v3, v24, v26, v28')
        a('v_max_f32 v3, v3, v30')
        a('v_sub_f32 v2, v2, v3')
        a(f'v_mul_f32 v2, {LOG2E:#x}, v2')
        a('v_exp_f32 v2, v2')
        def sel(u):
            for r in range(4): a(f'v_and_b32 v{24+4*(u&1)+r}, v{8+u}, v{4+r}')
        sel(0)
        a('v_mov_b32 v3, v2')
        for u in range(16):
            s = 24+4*(u&1)
            if u < 15: sel(u+1)
            else:
                a('v_mov_b32 v8, 0'); a('v_mov_b32 v9, 1'); a('v_lshlrev_b32 v10, 3, v0'); a('v_mov_b32 v11, s47')
            if 31-2*u < max(o.depth, 1) or not o.depth: a(f's_waitcnt vmcnt({31-2*u})')
            c0 = 'v[32:35]' if u else '0'
            c1 = 'v[36:39]' if u else '0'
            a(f'v_mfma_f32_16x16x32_bf16 v[32:35], v[{s}:{s+3}], v[{40+8*u}:{43+8*u}], {c0}')
            if 30-2*u < max(o.depth, 1) or not o.depth: a(f's_waitcnt vmcnt({30-2*u})')
            a(f'v_mfma_f32_16x16x32_bf16 v[36:39], v[{s}:{s+3}], v[{44+8*u}:{47+8*u}], {c1}')
        self.stamp(3)
        a('v_pk_mul_f32 v[24:25], v[32:33], v[2:3]')
        a('v_pk_mul_f32 v[26:27], v[34:35], v[2:3]')
        a('s_mov_b32 exec_lo, 0')
        a('v_pk_mul_f32 v[24:25], v[36:37], v[2:3]')
        a('v_pk_mul_f32 v[26:27], v[38:39], v[2:3]')
        a('s_mov_b32 exec_lo, -1')
        a(f'ds_write_b128 v1, v[24:27] offset:{L_OP}')
        a('s_mov_b64 exec, 1')
        a(f'ds_add_rtn_u32 v9, v8, v9 offset:{L_CNTV}')
        a('s_mov_b64 exec, -1')
        for k in range(8): a(f'ds_read_b64 v[{40+2*k}:{41+2*k}], v10 offset:{L_OP+512*k}')
        a('s_waitcnt lgkmcnt(8)')
        a('v_readfirstlane_b32 s10, v9')
        a('s_cmp_lg_u32 s10, 3')
        a('s_cbranch_scc1 L_vfin')
        a('s_waitcnt lgkmcnt(0)')
        self.tree_add([range(40, 56, 2), range(41, 56, 2)])
        self.tagw(40, 11); self.tagw(41, 11)
        a('buffer_store_dwordx2 v[40:41], v10, s[48:51], s12 offen')
        a(f's_add_u32 s12, s12, {WS_B}')
        a('buffer_store_dwordx2 v[40:41], v10, s[48:51], s12 offen sc1')
        a.label('L_vfin')
        self.stamp(4)
        self.finish()

    def s0path(self):
        a, o = self.a, self.o
        WF = o.wflags
        a.label('L_S0')
        a('s_sub_u32 s8, s5, 11')
        a('s_cmp_lt_u32 s8, 12')
        a('s_cbranch_scc0 L_S0m')
        a('s_lshl_b32 s8, s8, 3')
        a('s_add_u32 s8, s8, s4')
        a('s_and_b32 s9, s8, 1')
        a('s_lshr_b32 s8, s8, 1')
        a('v_lshrrev_b32 v1, 3, v0')
        a(f's_mov_b32 s10, {32*6144}')
        a('v_mul_lo_u32 v2, v1, s10')
        a('v_and_b32 v3, 7, v0')
        a('v_lshl_add_u32 v2, v3, 4, v2')
        a(f's_mul_i32 s10, s9, {256*6144}')
        a('s_lshl_b32 s11, s8, 7')
        a('s_add_u32 s10, s10, s11')
        a('v_lshlrev_b32 v3, 3, v0')
        a('s_lshl_b32 s11, s9, 9')
        a('s_movk_i32 s12, 6144')
        a('s_waitcnt lgkmcnt(0)')
        self.srd(52, 36, 1024)
        self.srd(56, 38, 3145728)
        a(f's_load_dword s46, s[44:45], {WS_EPOCH}')
        a('buffer_load_dwordx2 v[8:9], v3, s[52:55], s11 offen')
        for t in range(32):
            a(f'buffer_load_dwordx4 v[{40+4*t}:{43+4*t}], v2, s[56:59], s10 offen {WF}')
            if t < 31: a('s_add_u32 s10, s10, s12')
        self.stamp(1)
        a('s_barrier')
        self.srd(48, 44, WS_SIZE)
        self.masks(4, 2)
        a('s_waitcnt vmcnt(32)')
        a('v_lshlrev_b32 v12, 16, v8'); a('v_and_b32 v13, 0xffff0000, v8')
        a('v_lshlrev_b32 v14, 16, v9'); a('v_and_b32 v15, 0xffff0000, v9')
        for r in range(4): a(f'v_mul_f32 v{16+r}, {f32(-1.4426950408889634)}, v{12+r}')
        for r in range(4): a(f'v_min_f32 v{16+r}, {f32(126.0)}, v{16+r}')
        for r in range(4): a(f'v_exp_f32 v{16+r}, v{16+r}')
        for r in range(4): a(f'v_add_f32 v{16+r}, 1.0, v{16+r}')
        for r in range(4): a(f'v_rcp_f32 v{20+r}, v{16+r}')
        for r in range(4): a(f'v_mul_f32 v{24+r}, v{12+r}, v{20+r}')
        for r in range(4): a(f'v_fma_f32 v{12+r}, -v{24+r}, v{16+r}, v{12+r}')
        for r in range(4): a(f'v_fma_f32 v{12+r}, v{12+r}, v{20+r}, v{24+r}')
        for r in range(4): a(f'v_cvt_pk_bf16_f32 v{12+r}, v{12+r}, v{12+r}')
        a('v_lshlrev_b32 v2, 4, v0')
        a(f'ds_write_b128 v2, v[12:15] offset:{L_SC}')
        a('v_lshlrev_b32 v1, 7, v1')
        for half in range(2):
            for k in range(4): a(f'ds_read_b128 v[{8+4*k}:{11+4*k}], v1 offset:{L_SC+64*half+16*k}')
            a('s_waitcnt lgkmcnt(0)')
            def sel(tt):
                for r in range(4): a(f'v_and_b32 v{24+4*(tt&1)+r}, v{8+tt}, v{4+r}')
            sel(0)
            for tt in range(16):
                t = 16*half + tt
                s = 24+4*(t&1)
                if tt < 15: sel(tt+1)
                if t % 4 == 0: a(f's_waitcnt vmcnt({28-t})')
                acc = 32 + 4*(t&1)
                c = f'v[{acc}:{acc+3}]' if t > 1 else '0'
                a(f'v_mfma_f32_16x16x32_bf16 v[{acc}:{acc+3}], v[{s}:{s+3}], v[{40+4*t}:{43+4*t}], {c}')
        self.stamp(2)
        self.tag_setup()
        a('v_and_b32 v2, 7, v0')
        a('v_lshlrev_b32 v2, 5, v2')
        a('v_and_b32 v3, 16, v0')
        a('v_add_u32 v2, v2, v3')
        a('v_mov_b32 v9, s47')
        for r in range(4): a(f'v_mov_b32 v{24+r}, 0')
        for r in range(4): a(f'v_add_f32 v{32+r}, v{32+r}, v{36+r}')
        for r in range(4): a(f'v_permlane32_swap_b32 v{32+r}, v{24+r}')
        a('s_cmp_lt_u32 s8, 16')
        a('s_cbranch_scc1 L_Awide')
        for r in range(4): a(f'v_add_f32_dpp v{32+r}, v{24+r}, v{32+r} row_ror:8 {ALL}')
        a('s_lshl_b32 s10, s8, 8')
        a('s_lshl_b32 s11, s9, 13')
        a('s_add_u32 s10, s10, s11')
        a(f's_add_u32 s10, s10, {WS_MOD - 4096}')
        for r in range(4): self.tagw(32+r, 9)
        a('s_mov_b64 exec, 0x00ff00ff')
        a('buffer_store_dwordx4 v[32:35], v2, s[48:51], s10 offen sc1')
        self.stamp(3)
        a('s_branch L_S0w')
        a.label('L_Awide')
        a('s_nop 1')
        for r in range(4): a(f'v_add_f32_dpp v{40+2*r}, v{24+r}, v{32+r} row_ror:8 {ALL}')
        for r in range(4): a(f'v_mov_b32 v{41+2*r}, s46')
        a('v_lshlrev_b32 v2, 1, v2')
        a('s_lshl_b32 s10, s8, 9')
        a('s_lshl_b32 s11, s9, 13')
        a('s_add_u32 s10, s10, s11')
        a(f's_add_u32 s10, s10, {WS_MODW}')
        a('s_mov_b64 exec, 0x00ff00ff')
        a('buffer_store_dwordx4 v[40:43], v2, s[48:51], s10 offen sc1')
        a('buffer_store_dwordx4 v[44:47], v2, s[48:51], s10 offen offset:16 sc1')
        self.stamp(3)
        a('s_branch L_S0w')
        a.label('L_S0m')
        a('s_waitcnt lgkmcnt(0)')
        a(f's_load_dword s46, s[44:45], {WS_EPOCH}')
        a('s_barrier')
        self.srd(48, 44, WS_SIZE)
        a('s_waitcnt lgkmcnt(0)')
        self.tag_setup()
        a.label('L_S0w')
        a('s_mov_b64 exec, -1')
        TD = o.tdepth
        a('v_lshrrev_b32 v1, 1, v0')
        a('v_and_b32 v2, 1, v0')
        a('v_lshlrev_b32 v2, 4, v2')
        a('v_lshl_add_u32 v3, v1, 12, v2')
        a('s_lshl_b32 s10, s4, 19')
        a('s_lshl_b32 s11, s5, 5')
        a('s_add_u32 s10, s10, s11')
        self.srd(56, 24, 4194304)
        a(f's_mov_b32 s12, {L_WO}')
        def dma_loop(name, vaddr, srd, rowstep, blkstep, depth):
            a('s_mov_b32 s13, 0')
            a.label(name)
            for i in range(4):
                a('s_mov_b32 m0, s12')
                a(f's_waitcnt vmcnt({depth-1})')
                a(f'buffer_load_dwordx4 v{vaddr}, s[{srd}:{srd+3}], s10 offen {WF} lds')
                a('s_add_u32 s12, s12, 1024')
                a(f's_add_u32 s10, s10, {rowstep if i < 3 else blkstep - 3*rowstep}')
            a('s_add_u32 s13, s13, 1')
            a('s_cmp_lt_u32 s13, 4')
            a(f's_cbranch_scc1 {name}')
        dma_loop('L_dwo', 3, 56, 1024, 128*1024, TD)
        self.stamp(4)
        a('s_mul_i32 s76, s4, 11')
        a('s_add_u32 s76, s76, s5')
        a('s_cmp_lt_u32 s5, 11')
        a('s_cselect_b32 s76, s76, 100')
        a('s_cmp_lt_u32 s76, 86')
        a('s_cbranch_scc0 L_S0fin')
        a(f's_movk_i32 s10, {4*2752}')
        a('v_mul_lo_u32 v3, v1, s10')
        a('v_add_u32 v3, v3, v2')
        self.srd(56, 28, 1409024)
        a('s_lshl_b32 s10, s76, 5')
        dma_loop('L_dw1', 3, 56, 2752, 128*2752, TD)
        a('v_lshlrev_b32 v1, 4, v0')
        self.srd(56, 32, 1409024)
        a('s_lshl_b32 s10, s76, 14')
        dma_loop('L_dw2', 1, 56, 1024, 4096, TD*2)
        def iss():
            for rh in range(2):
                for i in range(8):
                    off = WS_MOD + rh*8192 + i*1024
                    if i % 4 == 0: a(f's_mov_b32 s10, {off}')
                    a(f'buffer_load_dwordx4 v[{40+32*rh+4*i}:{43+32*rh+4*i}], v1, s[48:51], s10 offen offset:{(i%4)*1024} sc1')
        self.poll(iss, range(40, 104), 10, sleep=8)
        self.stamp(5)
        for r in range(32): a(f'v_add_f32 v{40+r}, v{40+r}, v{72+r}')
        for r in range(32): self.rnd(40+r, 40+r)
        for r in range(16, 24): a(f'v_add_f32 v{40+r}, 1.0, v{40+r}')
        for r in range(16, 24): self.rnd(40+r, 40+r)
        dst = [L_GA, L_SBV, L_C1, L_GB]
        for i in range(8):
            a(f'ds_write_b128 v1, v[{40+4*i}:{43+4*i}] offset:{dst[i//2] + (i%2)*1024}')
        a('s_waitcnt lgkmcnt(0)')
        a.label('L_S0fin')
        a('s_waitcnt vmcnt(0)')
        self.stamp(6)
        self.finish()

    def s1path(self):
        a, o = self.a, self.o
        WF = o.wflags
        a.label('L_S1')
        a('v_mov_b32 v13, 0')
        a('v_lshlrev_b32 v2, 2, v0')
        a('s_mov_b64 exec, 0xffff')
        a('ds_write_b32 v2, v13')
        a('s_mov_b64 exec, -1')
        a('v_lshrrev_b32 v1, 4, v0')
        a('v_lshlrev_b32 v1, 17, v1')
        a('v_and_b32 v2, 15, v0')
        a('v_lshl_add_u32 v1, v2, 4, v1')
        a('s_lshl_b32 s10, s7, 19')
        a('s_lshl_b32 s11, s6, 8')
        a('s_add_u32 s10, s10, s11')
        a('s_add_u32 s12, s10, 65536')
        a('s_movk_i32 s13, 8192')
        a('v_lshlrev_b32 v2, 4, v0')
        a('v_lshlrev_b32 v3, 1, v0')
        a('s_lshl_b32 s11, s7, 7')
        a('s_waitcnt lgkmcnt(0)')
        self.srd(52, 16, 1024)
        self.srd(56, 22, 4194304)
        a(f's_load_dword s46, s[44:45], {WS_EPOCH}')
        a('buffer_load_dwordx4 v[8:11], v2, s[52:55], 0 offen')
        a('buffer_load_ushort v12, v3, s[52:55], s11 offen')
        a('s_barrier')
        for u in range(8):
            for hi in range(2):
                i = 2*u + hi
                sr = 's12' if hi else 's10'
                a(f'buffer_load_dwordx4 v[{40+4*i}:{43+4*i}], v1, s[56:59], {sr} offen {WF}')
                if u < 7: a(f's_add_u32 {sr}, {sr}, s13')
        self.srd(48, 44, WS_SIZE)
        self.masks(4, 2)
        a('s_waitcnt vmcnt(16) lgkmcnt(0)')
        self.tag_setup()
        self.stamp(1)
        for r in range(4):
            a(f'v_lshlrev_b32 v{16+2*r}, 16, v{8+r}'); a(f'v_and_b32 v{17+2*r}, 0xffff0000, v{8+r}')
        a('v_add_f32 v14, v16, v17'); a('v_mul_f32 v15, v16, v16')
        a('v_fmac_f32 v15, v17, v17')
        for r in range(18, 24):
            a(f'v_add_f32 v14, v14, v{r}'); a(f'v_fmac_f32 v15, v{r}, v{r}')
        self.allred_row('v_add_f32', 14); self.allred_row('v_add_f32', 15)
        self.allred_rows('v_add_f32', 14, 16); self.allred_rows('v_add_f32', 15, 16)
        self.ln_scalars(14, 15, 16, 17, 18)
        a('v_lshlrev_b32 v12, 16, v12')
        a('v_sub_f32 v12, v12, v16')
        self.rnd(12, 12)
        a('v_mul_f32 v12, v12, v17')
        self.rnd(12, 12)
        if o.ms >= 0: self.lds_spin(L_MS)
        a('v_lshlrev_b32 v2, 3, v0')
        a('s_lshl_b32 s10, s7, 9')
        a(f's_add_u32 s10, s10, {WS_MODW}')
        a(f's_add_u32 s11, s10, 8192')
        a(f's_add_u32 s12, s10, 4096')
        a(f's_add_u32 s13, s10, {8192+4096}')
        def iss1():
            for i, sr in enumerate(('s10', 's11', 's12', 's13')):
                a(f'buffer_load_dwordx2 v[{16+2*i}:{17+2*i}], v2, s[48:51], {sr} offen sc1')
        self.poll(iss1, (17, 19, 21, 23), 10, sleep=o.sleep1, wide=True)
        self.stamp(2)
        a('v_add_f32 v16, v16, v18'); a('v_add_f32 v18, v20, v22')
        self.rnd(16, 16); self.rnd(18, 18)
        a('v_add_f32 v18, 1.0, v18')
        self.rnd(18, 18)
        a('v_mul_f32 v12, v12, v18')
        self.rnd(12, 12)
        a('v_add_f32 v12, v12, v16')
        a('v_cvt_pk_bf16_f32 v12, v12, v12')
        a('v_lshlrev_b32 v2, 2, v0')
        a(f'ds_write_b32 v2, v12 offset:{L_H}')
        a('v_lshrrev_b32 v3, 3, v0')
        a('v_lshlrev_b32 v3, 5, v3')
        a(f'ds_read_b128 v[16:19], v3 offset:{L_H}')
        a(f'ds_read_b128 v[20:23], v3 offset:{L_H+16}')
        a('v_mov_b32 v14, 1')
        a('s_waitcnt lgkmcnt(0)')
        def sel(u):
            for r in range(4): a(f'v_and_b32 v{24+4*(u&1)+r}, v{16+u}, v{4+r}')
        sel(0)
        for u in range(8):
            s = 24+4*(u&1)
            if u < 7: sel(u+1)
            c0 = 'v[32:35]' if u else '0'
            c1 = 'v[36:39]' if u else '0'
            a(f'v_mfma_f32_16x16x32_bf16 v[32:35], v[{s}:{s+3}], v[{40+8*u}:{43+8*u}], {c0}')
            a(f'v_mfma_f32_16x16x32_bf16 v[36:39], v[{s}:{s+3}], v[{44+8*u}:{47+8*u}], {c1}')
        a('v_and_b32 v3, 15, v0')
        a('v_lshlrev_b32 v3, 6, v3')
        a('v_and_b32 v1, 16, v0')
        a('v_lshl_add_u32 v3, v1, 1, v3')
        a('s_lshl_b32 s11, s6, 13')
        a(f's_add_u32 s11, s11, {WS_QP}')
        a('s_lshl_b32 s10, s7, 10')
        a('s_add_u32 s10, s10, s11')
        a('s_add_u32 s12, s11, 4096')
        for r in range(4): a(f'v_mov_b32 v{16+r}, 0')
        for r in range(4): a(f'v_mov_b32 v{41+2*r}, s46')
        for r in range(4): a(f'v_permlane32_swap_b32 v{36+r}, v{16+r}')
        for r in range(4): a(f'v_add_f32 v{40+2*r}, v{32+r}, v{16+r}')
        a('s_mov_b32 exec_hi, 0')
        a('buffer_store_dwordx4 v[40:43], v3, s[48:51], s10 offen')
        a('buffer_store_dwordx4 v[44:47], v3, s[48:51], s10 offen offset:16')
        a(f's_add_u32 s10, s10, {WS_B}')
        a('buffer_store_dwordx4 v[40:43], v3, s[48:51], s10 offen sc1')
        a('buffer_store_dwordx4 v[44:47], v3, s[48:51], s10 offen offset:16 sc1')
        a('s_mov_b64 exec, -1')
        self.stamp(3)
        a('v_lshlrev_b32 v1, 4, v0')
        def iss2():
            for s in range(8): a(f'buffer_load_dwordx4 v[{48+4*s}:{51+4*s}], v1, s[48:51], {"s11" if s<4 else "s12"} offen offset:{1024*(s%4)} sc1')
        self.poll(iss2, range(49, 80, 2), 10, sleep=1, wide=True, dual=('s11', 's12'))
        self.stamp(4)
        self.tree_add([range(48, 80, 4), range(50, 80, 4)])
        a('v_cvt_pk_bf16_f32 v12, v48, v50')
        a(f'ds_write_b32 v2, v12 offset:{L_Q}')
        a('s_mov_b64 exec, 1')
        a(f'ds_write_b32 v13, v14 offset:{L_FLAGQ}')
        a('s_waitcnt lgkmcnt(0)')
        self.stamp(5)
        self.finish()

    def dump(self):
        a = self.a
        a.label('L_dump')
        a('s_mov_b64 exec, -1')
        a('s_waitcnt lgkmcnt(0)')
        a('v_mov_b32 v5, 0')
        for k in range(10): a(f'v_writelane_b32 v5, s{80+2*k}, {k}')
        a('s_getreg_b32 s10, hwreg(HW_REG_XCC_ID)')
        a('v_writelane_b32 v5, s10, 10')
        a('v_writelane_b32 v5, s15, 11')
        a('v_lshlrev_b32 v6, 2, v0')
        a('s_mov_b64 exec, 0xffff')
        if self.o.dbg:
            a('s_cmp_lg_u32 s2, 0'); a('s_cbranch_scc1 L_end')
            a('v_subrev_u32 v5, s80, v5')
            self.srd(12, 42, 64)
            a('s_cmp_eq_u32 s3, 2'); a('s_cbranch_scc1 L_dbgk')
            a('s_cmp_lg_u32 s3, 6'); a('s_cbranch_scc1 L_end')
            a('s_mov_b64 exec, 0x7e')
            a('buffer_store_dword v5, v6, s[12:15], 0 offen offset:36')
            a('s_endpgm')
            a.label('L_dbgk')
            a('s_mov_b64 exec, 0x3ff')
            a('buffer_store_dword v5, v6, s[12:15], 0 offen')
            a('s_endpgm')
            return
        a('s_mul_i32 s10, s2, 10')
        a('s_add_u32 s10, s10, s3')
        a('s_lshl_b32 s10, s10, 6')
        a('s_add_u32 s12, s44, 0x8000000')
        a('s_addc_u32 s13, s45, 0')
        a('s_and_b32 s13, s13, 0xffff')
        a('s_mov_b32 s14, 0x1000000')
        a('s_mov_b32 s15, 0x20000')
        a('buffer_store_dword v5, v6, s[12:15], s10 offen')
        a('s_endpgm')

def header():
    ref = open('cdna_kernels/' + NAME + '.s.ref').read().split('\n')
    out = []
    for l in ref:
        if l.startswith('; @launch'): break
        out.append(l)
    return '\n'.join(out)

def emit(o):
    g = G(o); g.build()
    kn = NAME + '_kernel'
    s = header() + f'\n; @launch grid=(256,1,1) block=(640,1,1) lds={LDS_BYTES}\n'
    s += f'''.amdgcn_target "amdgcn-amd-amdhsa--gfx950"
.text
.globl {kn}
.p2align 8
.type {kn},@function
{kn}:
{g.a.text()}
.section .rodata,"a"
.p2align 6
.amdhsa_kernel {kn}
  .amdhsa_next_free_vgpr 168
  .amdhsa_next_free_sgpr 102
  .amdhsa_accum_offset 168
  .amdhsa_group_segment_fixed_size 0
  .amdhsa_kernarg_size 120
  .amdhsa_user_sgpr_count 2
  .amdhsa_user_sgpr_kernarg_segment_ptr 1
  .amdhsa_system_sgpr_workgroup_id_x 1
  .amdhsa_float_denorm_mode_32 3
.end_amdhsa_kernel
'''
    return s

def parser():
    p = argparse.ArgumentParser()
    p.add_argument('-o', default='k.s')
    p.add_argument('--stamps', action='store_true')
    p.add_argument('--dbg', action='store_true')
    p.add_argument('--kvflags', default='nt')
    p.add_argument('--wflags', default='nt')
    p.add_argument('--pattern', default='inter')
    p.add_argument('--rot', default='hash')
    p.add_argument('--ms', type=int, default=18)
    p.add_argument('--tdepth', type=int, default=5)
    p.add_argument('--ack3', type=int, default=1)
    p.add_argument('--ack4', type=int, default=1)
    p.add_argument('--sleep1', type=int, default=8)
    p.add_argument('--depth', type=int, default=6)
    p.add_argument('--rel', type=int, default=3)
    p.add_argument('--warm', type=int, default=1)
    p.add_argument('--hop', type=int, default=448)
    p.add_argument('--sleep2', type=int, default=1)
    p.add_argument('--sleep3', type=int, default=1)
    p.add_argument('--sleep4', type=int, default=1)
    p.add_argument('--meta', action='store_true')
    return p

META = """
.amdgpu_metadata
---
amdhsa.version: [1, 2]
amdhsa.kernels:
  - .name: {name}
    .symbol: {name}.kd
    .kernarg_segment_size: 120
    .kernarg_segment_align: 8
    .group_segment_fixed_size: 0
    .private_segment_fixed_size: 0
    .wavefront_size: 64
    .sgpr_count: 102
    .vgpr_count: 168
    .max_flat_workgroup_size: 640
    .args:
      - {{.name: kernargs, .size: 120, .offset: 0, .value_kind: by_value}}
...
.end_amdgpu_metadata
"""
if __name__ == '__main__':
    o = parser().parse_args()
    if o.dbg: o.stamps = True
    s = emit(o)
    if o.meta: s += META.format(name=NAME + '_kernel')
    open(o.o, 'w').write(s)
```

```python
import sys, argparse, re
from asmlib import Asm

NAME = 'adaLN_cond__mha_block_cached__mixer_channel_mlp__decode'
WS_EPOCH = 0
WS_MODW = 0x1000
WS_MOD = 0x5000
WS_QF  = 0x10000
WS_ST  = 0x14000
WS_OP  = 0x20000
WS_AP  = 0x40000
WS_ZP  = 0x50000
WS_B = 0x80000
WS_SIZE = 0xC0000
L_P = 0; L_ML = 3072; L_OP = 4096
L_RA = 0; L_RB = 2048; L_RC = 4096; L_CNT = 6144; L_H = 8192; L_SC = 10240; L_SC2 = 6656
L_R2 = 12288; L_SA = 13312; L_SB2 = 13376; L_R3 = 13568; L_X1 = 14336
L_W2 = 16384
LDS_BYTES = 49152
NT = 43
D0 = 80
LOG2E = 0x3fb8aa3b
SPIN_MAX = 200000
ALL = 'row_mask:0xf bank_mask:0xf'

def f32(x):
    import struct
    return '0x%08x' % struct.unpack('<I', struct.pack('<f', x))[0]

class G:
    def __init__(self, o):
        self.o = o
        self.a = Asm()
    def stamp(self, k):
        if self.o.stamps: self.a(f's_memrealtime s[{80+2*k}:{81+2*k}]')
    def srd(self, d, p, size):
        a = self.a
        a(f's_mov_b32 s{d}, s{p}')
        a(f's_and_b32 s{d+1}, s{p+1}, 0xffff')
        a(f's_mov_b32 s{d+2}, {size}')
        a(f's_mov_b32 s{d+3}, 0x20000')
    def tag_setup(self):
        a = self.a
        a('s_add_u32 s46, s46, 1')
        a('s_and_b32 s47, s46, 0xff')
        a('s_and_b32 s71, s46, 0xffff')
        a('s_mov_b32 s72, 0xffffff00')
    def rnd(self, d, s):
        self.a(f'v_cvt_pk_bf16_f32 v{d}, 0, v{s}')
    def setexec(self, lo, hi):
        a = self.a
        a(f's_mov_b32 exec_lo, {lo:#x}'); a(f's_mov_b32 exec_hi, {hi:#x}')
    def masks(self, m, t):
        a = self.a
        a(f'v_and_b32 v{t}, 1, v0')
        a(f'v_lshlrev_b32 v{t}, 4, v{t}')
        a(f'v_mov_b32 v{t+1}, 0xffff')
        a(f'v_lshlrev_b32 v{t}, v{t}, v{t+1}')
        a(f'v_bfe_u32 v{t+1}, v0, 1, 2')
        for r in range(4):
            a(f'v_cmp_eq_u32 vcc, {r}, v{t+1}')
            a(f'v_cndmask_b32 v{m+r}, 0, v{t}, vcc')
    def or_tree(self, rs, acc):
        a = self.a
        rs = list(rs)
        if len(rs) >= 6:
            h = len(rs)//2
            self.or_chain2(rs[:h], acc, rs[h:], acc+1)
            a(f'v_or_b32 v{acc}, v{acc}, v{acc+1}')
        else:
            self.or_chain2(rs, acc, [], None)
    def or_chain2(self, r1, a1, r2, a2):
        def steps(rs, acc):
            out = []
            if not rs: return out
            if len(rs) >= 3: out.append(f'v_or3_b32 v{acc}, v{rs[0]}, v{rs[1]}, v{rs[2]}'); rs = rs[3:]
            else: out.append(f'v_or_b32 v{acc}, v{rs[0]}, v{rs[1]}'); rs = rs[2:]
            while len(rs) >= 2:
                out.append(f'v_or3_b32 v{acc}, v{acc}, v{rs[0]}, v{rs[1]}'); rs = rs[2:]
            if rs: out.append(f'v_or_b32 v{acc}, v{acc}, v{rs[0]}')
            return out
        s1, s2 = steps(r1, a1), steps(r2, a2)
        for i in range(max(len(s1), len(s2))):
            if i < len(s1): self.a(s1[i])
            if i < len(s2): self.a(s2[i])
    def poll(self, issue, regs, acc, sleep=1, wide=False, dual=(), t16=False):
        a = self.a
        top = a.newlabel('Lpoll'); retry = a.newlabel('Lretry'); done = a.newlabel('Ldone')
        a('s_mov_b32 s15, 0')
        a(f's_branch {top}')
        a.label(retry)
        a('s_add_u32 s15, s15, 1')
        a(f's_cmp_gt_u32 s15, {SPIN_MAX}')
        a(f's_cbranch_scc1 {done}')
        if sleep: a(f's_sleep {sleep}')
        if dual:
            a('s_and_b32 s14, s15, 3')
            a('s_cmp_eq_u32 s14, 3')
            a(f's_cselect_b32 s14, {WS_B}, 0')
            for r in dual:
                a(f's_andn2_b32 {r}, {r}, {WS_B}')
                a(f's_or_b32 {r}, {r}, s14')
        a.label(top)
        issue()
        a('s_waitcnt vmcnt(0)')
        for r in regs: a(f'v_xor_b32 v{r}, {"s46" if wide else ("s71" if t16 else "s47")}, v{r}')
        self.or_tree(regs, acc)
        if not wide: a(f'v_and_b32 v{acc}, {"0xffff" if t16 else "0xff"}, v{acc}')
        a(f'v_cmp_ne_u32 vcc, 0, v{acc}')
        a(f's_cbranch_vccnz {retry}')
        a.label(done)
    def tagw(self, r, vt):
        self.a(f'v_and_or_b32 v{r}, v{r}, s72, v{vt}')
    def allred_rows(self, op, r, t):
        a = self.a
        a(f'v_mov_b32 v{t}, v{r}')
        a(f'v_permlane16_swap_b32 v{r}, v{t}')
        a(f'{op} v{r}, v{r}, v{t}')
        a(f'v_mov_b32 v{t}, v{r}')
        a(f'v_permlane32_swap_b32 v{r}, v{t}')
        a(f'{op} v{r}, v{r}, v{t}')
    def allred_row(self, op, r, n=4):
        a = self.a
        for m in ('quad_perm:[1,0,3,2]', 'quad_perm:[2,3,0,1]', 'row_half_mirror', 'row_mirror')[:n]:
            a(f'{op}_dpp v{r}, v{r}, v{r} {m} {ALL}')
    def tree_add(self, regs_list):
        a = self.a
        L = [list(r) for r in regs_list]
        while any(len(r) > 1 for r in L):
            for i in range(0, max(len(r) for r in L) - 1, 2):
                for r in L:
                    if i + 1 < len(r): a(f'v_add_f32 v{r[i]}, v{r[i]}, v{r[i+1]}')
            L = [r[0::2] for r in L]
    def pair4(self, raw, dst):
        a = self.a
        for h in range(2):
            for k in range(4):
                a(f'v_perm_b32 v{dst+8*h+2*k}, v{raw+8*h+4+k}, v{raw+8*h+k}, s73')
                a(f'v_perm_b32 v{dst+8*h+2*k+1}, v{raw+8*h+4+k}, v{raw+8*h+k}, s74')
    def gemv8(self, P, pk, z):
        a = self.a
        for n in range(8): a(f'v_dot2c_f32_bf16_dpp v{z+n}, v{pk}, v{P+n} quad_perm:[0,0,2,2] {ALL}')
        for n in range(8): a(f'v_dot2c_f32_bf16_dpp v{z+n}, v{pk}, v{P+8+n} quad_perm:[1,1,3,3] {ALL}')
        for n in range(4): a(f'v_permlane32_swap_b32 v{z+n}, v{z+n+4}')
        for n in range(4): a(f'v_add_f32 v{z+n}, v{z+n}, v{z+n+4}')
        for n in range(2): a(f'v_permlane16_swap_b32 v{z+n}, v{z+n+2}')
        for n in range(2): a(f'v_add_f32 v{z+n}, v{z+n}, v{z+n+2}')
        a(f'v_add_f32_dpp v{z}, v{z}, v{z} row_ror:8 row_mask:0xf bank_mask:0x3')
        a(f'v_add_f32_dpp v{z}, v{z+1}, v{z+1} row_ror:8 row_mask:0xf bank_mask:0xc')
        a(f'v_add_f32_dpp v{z}, v{z}, v{z} row_shl:4 row_mask:0xf bank_mask:0x5')
        a(f'v_add_f32_dpp v{z}, v{z}, v{z} quad_perm:[2,3,0,1] {ALL}')
    def ln_scalars(self, S1, S2, m, rs, t):
        a = self.a
        a(f'v_mul_f32 v{S1}, {f32(1/512)}, v{S1}')
        a(f'v_mul_f32 v{S2}, {f32(1/512)}, v{S2}')
        a(f'v_fma_f32 v{S2}, -v{S1}, v{S1}, v{S2}')
        self.rnd(m, S1)
        a(f'v_max_f32 v{S2}, 0, v{S2}')
        self.rnd(t, S2)
        a(f'v_add_f32 v{t}, {f32(1e-5)}, v{t}')
        self.rnd(t, t)
        a(f'v_sqrt_f32 v{t}, v{t}')
        self.rnd(t, t)
        a(f'v_rcp_f32 v{rs}, v{t}')
    def lds_spin(self, off, extra=None, addr=None, ge=1, tmp=3):
        a = self.a
        top = a.newlabel('Lspin'); done = a.newlabel('Lspd')
        a('s_mov_b32 s15, 0')
        if addr is None:
            a('v_mov_b32 v2, 0'); addr = 2
        a.label(top)
        a(f'ds_read_b32 v{tmp}, v{addr} offset:{off}')
        if extra: extra()
        a('s_waitcnt lgkmcnt(0)')
        a(f'v_readfirstlane_b32 s14, v{tmp}')
        a('s_add_u32 s15, s15, 1')
        a(f's_cmp_ge_u32 s14, {ge}')
        a(f's_cbranch_scc1 {done}')
        a(f's_cmp_gt_u32 s15, {SPIN_MAX*8}')
        a(f's_cbranch_scc1 {done}')
        a('s_sleep 1')
        a(f's_branch {top}')
        a.label(done)
    def finish(self):
        a = self.a
        if self.o.stamps: a('s_branch L_dump')
        else: a('s_endpgm')

    def pairs(self, raw, dst, npair):
        a = self.a
        for k in range(npair):
            for r in range(4):
                a(f'v_perm_b32 v{dst+8*k+2*r}, v{raw+8*k+4+r}, v{raw+8*k+r}, s73')
                a(f'v_perm_b32 v{dst+8*k+2*r+1}, v{raw+8*k+4+r}, v{raw+8*k+r}, s74')
    def red8(self, z):
        a = self.a
        for n in range(4): a(f'v_permlane32_swap_b32 v{z+n}, v{z+n+4}')
        for n in range(4): a(f'v_add_f32 v{z+n}, v{z+n}, v{z+n+4}')
        for n in range(2): a(f'v_permlane16_swap_b32 v{z+n}, v{z+n+2}')
        for n in range(2): a(f'v_add_f32 v{z+n}, v{z+n}, v{z+n+2}')
        a(f'v_add_f32_dpp v{z}, v{z}, v{z} row_ror:8 row_mask:0xf bank_mask:0x3')
        a(f'v_add_f32_dpp v{z}, v{z+1}, v{z+1} row_ror:8 row_mask:0xf bank_mask:0xc')
    def silu(self, regs, t):
        a = self.a
        n = len(regs)
        for i, r in enumerate(regs): a(f'v_mul_f32 v{t+i}, {f32(-1.4426950408889634)}, v{r}')
        for i, r in enumerate(regs): a(f'v_min_f32 v{t+i}, {f32(126.0)}, v{t+i}')
        for i, r in enumerate(regs): a(f'v_exp_f32 v{t+i}, v{t+i}')
        for i, r in enumerate(regs): a(f'v_add_f32 v{t+i}, 1.0, v{t+i}')
        for i, r in enumerate(regs): a(f'v_rcp_f32 v{t+n+i}, v{t+i}')
        for i, r in enumerate(regs): a(f'v_mul_f32 v{t+2*n+i}, v{r}, v{t+n+i}')
        for i, r in enumerate(regs): a(f'v_fma_f32 v{r}, -v{t+2*n+i}, v{t+i}, v{r}')
        for i, r in enumerate(regs): a(f'v_fma_f32 v{r}, v{r}, v{t+n+i}, v{t+2*n+i}')
        for i, r in enumerate(regs): a(f'v_cvt_pk_bf16_f32 v{r}, v{r}, v{r}')
    def mfma64(self, vals, W, n, waits=None):
        a = self.a
        def sel(t):
            for r in range(4): a(f'v_and_b32 v{24+4*(t&1)+r}, v{vals+t}, v{4+r}')
        sel(0)
        for t in range(n):
            s = 24+4*(t&1)
            if t < n-1: sel(t+1)
            if waits and t in waits: a(waits[t])
            c = 'v[32:35]' if t else '0'
            a(f'v_mfma_f32_16x16x32_bf16 v[32:35], v[{s}:{s+3}], v[{W+4*t}:{W+4*t+3}], {c}')
    def gate_signal(self):
        a = self.a
        a('v_mov_b32 v22, 1')
        a('s_mov_b64 exec, 1')
        a(f'ds_add_u32 v19, v22 offset:{L_CNT+12}')
        a('s_mov_b64 exec, -1')
    def red_setup(self):
        a = self.a
        a('v_and_b32 v16, 7, v0')
        a('v_lshlrev_b32 v16, 5, v16')
        a('v_and_b32 v17, 16, v0')
        a('v_add_u32 v16, v16, v17')
        a('v_and_b32 v17, 32, v0')
        a('v_lshl_add_u32 v16, v17, 3, v16')
        a('s_lshl_b32 s10, s9, 9')
        a('v_add_u32 v16, s10, v16')
        a('v_lshrrev_b32 v19, 4, v0')
        a('v_lshlrev_b32 v17, 9, v19')
        a('v_and_b32 v18, 15, v0')
        a('v_lshl_add_u32 v17, v18, 4, v17')
        a('v_lshl_add_u32 v18, v18, 2, v19')
        a('v_mov_b32 v19, 0')
    def red4(self, area, cnt, skip):
        a = self.a
        a('v_mov_b32 v22, 1')
        self.setexec(0x00ff00ff, 0xff00ff00)
        a(f'ds_write_b128 v16, v[32:35] offset:{area}')
        a('s_mov_b64 exec, 1')
        a(f'ds_add_rtn_u32 v22, v19, v22 offset:{cnt}')
        a('s_mov_b64 exec, -1')
        for k in range(2): a(f'ds_read_b128 v[{40+4*k}:{43+4*k}], v17 offset:{area+256*k}')
        a('s_waitcnt lgkmcnt(0)')
        a('v_readfirstlane_b32 s10, v22')
        a('s_cmp_lg_u32 s10, 3')
        a(f's_cbranch_scc1 {skip}')
        for d in range(4): a(f'v_add_f32 v{40+d}, v{40+d}, v{44+d}')
        a('v_permlane32_swap_b32 v40, v42')
        a('v_permlane32_swap_b32 v41, v43')
        a('v_add_f32 v40, v40, v42')
        a('v_add_f32 v41, v41, v43')
        a('v_permlane16_swap_b32 v40, v41')
        a('v_add_f32 v40, v40, v41')
    def chain(self, name, nw, first):
        a = self.a
        a('s_mov_b64 exec, 0')
        for w in range(nw-1):
            a(f's_cmp_eq_u32 s9, {w}')
            a(f's_cbranch_scc1 Lchain{name}_{w}')
        a(f's_branch Lchain{name}_{nw-1}')
        a.label(f'L_warmdone{name}')
        a('s_mov_b64 exec, -1')
    def code_prefetch(self, lo, hi, tag, reg='s9'):
        a = self.a
        a(f's_cmp_ge_u32 {reg}, 2')
        a(f's_cbranch_scc1 L_nopf{tag}')
        a('s_getpc_b64 s[10:11]')
        a.label(f'L_pc{tag}')
        a(f's_add_u32 s10, s10, {lo}-L_pc{tag}')
        a('s_addc_u32 s11, s11, 0')
        a('v_lshlrev_b32 v2, 7, v0')
        a('s_lshl_b32 s14, s9, 13')
        a('v_add_u32 v2, s14, v2')
        a(f'v_min_u32 v2, {hi}-{lo}, v2')
        a('global_load_dword v3, v2, s[10:11]')
        a.label(f'L_nopf{tag}')

    def kvload(self, t):
        a, o = self.a, self.o
        if t == NT-1:
            a('s_cmp_eq_u32 s78, 0')
            lab = a.newlabel('Lskip')
            a(f's_cbranch_scc1 {lab}')
        a(f'buffer_load_dwordx4 v[{D0+4*t}:{D0+4*t+3}], v1, s[52:55], s12 offen {o.kvflags}')
        if t == NT-1: a.label(lab)
        else:
            a('s_add_u32 s12, s12, s13')
            if o.rot != 'none':
                a('s_cmp_eq_u32 s12, s79')
                a('s_cselect_b32 s12, 0, s12')
    def build(self):
        a, o = self.a, self.o
        a.label('L_entry')
        a('s_load_dwordx16 s[16:31], s[0:1], 0')
        a('s_load_dwordx8 s[32:39], s[0:1], 64')
        a('s_load_dwordx4 s[40:43], s[0:1], 96')
        a('s_load_dwordx2 s[44:45], s[0:1], 112')
        a('s_cmp_ge_u32 s2, 256')
        a('s_cbranch_scc1 L_end')
        if o.stamps:
            for k in range(10): a(f's_mov_b64 s[{80+2*k}:{81+2*k}], 0')
        self.stamp(0)
        a('v_lshrrev_b32 v1, 6, v0')
        a('v_and_b32 v0, 63, v0')
        a('v_readfirstlane_b32 s3, v1')
        a('s_and_b32 s4, s2, 7')
        a('s_lshr_b32 s5, s2, 3')
        a('s_and_b32 s9, s3, 3')
        a('s_cmp_lt_u32 s5, 8')
        a('s_cbranch_scc1 L_S')
        a('s_sub_u32 s7, s5, 8')
        a('s_and_b32 s6, s7, 3')
        a('s_lshl_b32 s8, s4, 2')
        a('s_add_u32 s6, s6, s8')
        a('s_lshr_b32 s7, s7, 2')
        a('s_cmp_lt_u32 s7, 4')
        a('s_cselect_b32 s78, 1, 0')
        if o.pattern == 'inter':
            a('s_mul_i32 s10, s7, 172')
            a('s_cmp_eq_u32 s7, 5')
            a('s_cselect_b32 s10, 856, s10')
            step = 4096
        else:
            a('s_lshl_b32 s10, s7, 2')
            step = 24*1024
        a('s_add_u32 s10, s10, s9')
        a('s_lshl_b32 s10, s10, 10')
        a('s_lshl_b32 s11, s6, 20')
        a('s_add_u32 s10, s10, s11')
        a('v_lshl_add_u32 v1, v0, 4, s10')
        a(f's_mov_b32 s13, {step}')
        if o.rot == 'none': a('s_mov_b32 s12, 0')
        else:
            a('s_mul_i32 s12, s2, 0x9E3779B1'); a('s_lshr_b32 s12, s12, 27')
            a('s_mul_i32 s12, s12, s13')
            a('s_add_u32 s79, s78, 42')
            a('s_mul_i32 s79, s79, s13')
        a('s_mov_b32 s54, 33554432')
        a('s_mov_b32 s55, 0x20000')
        a('s_cmp_ge_u32 s3, 4')
        a('s_cbranch_scc1 L_Vpre')
        self.stamp(4)
        a('s_waitcnt lgkmcnt(0)')
        self.stamp(5)
        a('s_mov_b32 s52, s18')
        a('s_and_b32 s53, s19, 0xffff')
        for t in range(o.first): self.kvload(t)
        self.stamp(6)
        a('s_branch L_K')
        self.s_issue()
        a.label('L_Vpre')
        if o.warm: self.code_prefetch('L_A0', 'L_A1', 'a')
        a('s_waitcnt vmcnt(0) lgkmcnt(0)')
        a(f's_load_dword s46, s[44:45], {WS_EPOCH}')
        a('s_mov_b32 s52, s20')
        a('s_and_b32 s53, s21, 0xffff')
        if o.warm: self.chain('a', 4, 0)
        a('s_branch L_V')
        a.label('L_S0')
        self.spath()
        if o.warm: a.hop_every = o.hop
        h0 = len(a.hops)
        self.tpath()
        h1 = len(a.hops)
        a.label('L_A0')
        self.kpath()
        self.vpath()
        a.label('L_A1')
        h2 = len(a.hops)
        a.hop_every = 0
        if o.stamps: self.dump()
        a.label('L_end')
        a('s_endpgm')
        if o.warm:
            txt = a.text()
            for name, lo, hi in (('t', h0, h1), ('a', h1, h2)):
                bounds = [lo + round((hi-lo)*i/4) for i in range(5)]
                for w in range(4):
                    txt = txt.replace(f'Lchain{name}_{w}', f'Lhop_{bounds[w]}')
                for k in range(lo, hi):
                    tgt = f'L_warmdone{name}' if (k+1) in bounds[1:] else f'Lhop_{k+1}'
                    txt = re.sub(rf'Lhopnext_{k}\b', tgt, txt)
            a.out = txt.split('\n')

    def kpath(self):
        a, o = self.a, self.o
        DK = o.depth
        a.label('L_K')
        self.stamp(7)
        if o.stamps:
            a(f's_waitcnt vmcnt({o.first-1})'); self.stamp(8)
        a(f's_load_dword s46, s[44:45], {WS_EPOCH}')
        for t in range(o.first, NT):
            d = o.d0 if t < o.n0 else DK
            if d and t >= d: a(f's_waitcnt vmcnt({d-1})')
            self.kvload(t)
        self.stamp(1)
        self.srd(48, 44, WS_SIZE)
        a('s_waitcnt lgkmcnt(0)')
        self.tag_setup()
        a('v_and_b32 v8, 15, v0')
        a('v_lshlrev_b32 v8, 5, v8')
        a('s_lshl_b32 s10, s6, 9')
        a(f's_add_u32 s10, s10, {WS_QF}')
        def issq():
            a('buffer_load_dwordx4 v[12:15], v8, s[48:51], s10 offen sc1')
            a('buffer_load_dwordx4 v[16:19], v8, s[48:51], s10 offen offset:16 sc1')
        self.poll(issq, range(12, 20), 10, sleep=o.sleepq, dual=('s10',), t16=True)
        self.stamp(2)
        a('s_mov_b32 s74, 0x07060302')
        for r in range(4): a(f'v_perm_b32 v{4+r}, v{13+2*r}, v{12+2*r}, s74')
        R = lambda t: D0+4*t
        for blk in range(6):
            ts = [t for t in range(8*blk, 8*blk+8) if t < NT]
            for t in ts: a(f'v_dot2_f32_bf16 v{R(t)}, v{R(t)}, v4, 0')
            for j in range(1, 4):
                for t in ts: a(f'v_dot2_f32_bf16 v{R(t)}, v{R(t)+j}, v{4+j}, v{R(t)}')
            for t in ts[0::2]: a(f'v_add_f32_dpp v{R(t)}, v{R(t)}, v{R(t)} row_ror:8 row_mask:0xf bank_mask:0x3')
            for t in ts[1::2]: a(f'v_add_f32_dpp v{R(t-1)}, v{R(t)}, v{R(t)} row_ror:8 row_mask:0xf bank_mask:0xc')
            for t in ts[0::4]: a(f'v_add_f32_dpp v{R(t)}, v{R(t)}, v{R(t)} row_shl:4 row_mask:0xf bank_mask:0x5')
            for t in ts[2::4]: a(f'v_add_f32_dpp v{R(t-2)}, v{R(t)}, v{R(t)} row_shr:4 row_mask:0xf bank_mask:0xa')
        U = [R(4*u) for u in range(11)]
        for m in ('quad_perm:[1,0,3,2]', 'quad_perm:[2,3,0,1]'):
            for r in U: a(f'v_add_f32_dpp v{r}, v{r}, v{r} {m} {ALL}')
        S = (24, 25, 26)
        for q, pat in ((1, 0x22222222), (2, 0x44444444), (3, 0x88888888)):
            a(f's_mov_b32 s10, {pat:#x}'); a(f's_mov_b32 s11, {pat:#x}')
            for i in range(3):
                if 4*i+q < 11: a(f'v_cndmask_b32 v{S[i]}, v{U[4*i] if q==1 else S[i]}, v{U[4*i+q]}, s[10:11]')
        for r in S: self.rnd(r, r)
        for r in S: a(f'v_mul_f32 v{r}, {f32(128**-0.5)}, v{r}')
        for r in S: self.rnd(r, r)
        a('s_cmp_eq_u32 s78, 0')
        a('s_cselect_b32 s10, 0x00400040, 0')
        a('s_or_b32 s10, s10, 0xc888c888')
        a('s_mov_b32 s11, s10')
        a('v_mov_b32 v12, 0xff800000')
        a('v_cndmask_b32 v26, v26, v12, s[10:11]')
        a('v_max3_f32 v40, v24, v25, v26')
        self.allred_row('v_max_f32', 40)
        self.allred_rows('v_max_f32', 40, 12)
        for r in S: a(f'v_sub_f32 v{r}, v{r}, v40')
        for r in S: a(f'v_mul_f32 v{r}, {LOG2E:#x}, v{r}')
        for r in S: a(f'v_exp_f32 v{r}, v{r}')
        a('v_lshrrev_b32 v13, 3, v0')
        a('v_mul_u32_u24 v13, 96, v13')
        a('v_and_b32 v14, 3, v0')
        a('v_lshl_add_u32 v13, v14, 3, v13')
        a('v_and_b32 v14, 4, v0')
        a('s_mul_i32 s10, s9, 768')
        a('v_add3_u32 v13, v13, v14, s10')
        a('v_add_f32 v41, v24, v25')
        a('v_add_f32 v41, v41, v26')
        for r in S: a(f'v_cvt_pk_bf16_f32 v{r}, v{r}, v{r}')
        for i in range(3): a(f'ds_write_b32 v13, v{S[i]} offset:{L_P+32*i}')
        a('s_lshl_b32 s10, s9, 2')
        a('v_mov_b32 v12, s10')
        a('s_mov_b64 exec, 1')
        a(f'ds_write_b32 v12, v40 offset:{L_ML}')
        a('s_mov_b64 exec, -1')
        self.allred_row('v_add_f32', 41)
        self.allred_rows('v_add_f32', 41, 12)
        a('v_mov_b32 v43, s47')
        a('s_getreg_b32 s10, hwreg(HW_REG_XCC_ID)')
        a('s_lshl_b32 s10, s10, 8')
        self.tagw(40, 43); self.tagw(41, 43)
        a('v_or_b32 v42, s10, v43')
        a('v_mov_b32 v12, 0')
        a('s_lshl_b32 s10, s6, 9')
        a('s_lshl_b32 s11, s7, 6')
        a('s_add_u32 s10, s10, s11')
        a('s_lshl_b32 s11, s9, 4')
        a('s_add_u32 s10, s10, s11')
        a(f's_add_u32 s10, s10, {WS_ST}')
        a(f's_add_u32 s11, s10, {WS_B}')
        a('s_mov_b64 exec, 1')
        a('buffer_store_dwordx4 v[40:43], v12, s[48:51], s10 offen')
        a('buffer_store_dwordx4 v[40:43], v12, s[48:51], s11 offen sc1')
        a('s_waitcnt lgkmcnt(0)')
        self.stamp(3)
        a('s_barrier')
        self.finish()

    def vpath(self):
        a, o = self.a, self.o
        DV = o.depthv
        a.label('L_V')
        self.stamp(5)
        for r in range(D0+4*42, D0+4*44): a(f'v_mov_b32 v{r}, 0')
        for t in range(NT):
            d = o.dv1 if t < o.n1 else DV
            if d and t >= d: a(f's_waitcnt vmcnt({d-1})')
            self.kvload(t)
        self.stamp(1)
        self.masks(4, 2)
        self.srd(48, 44, WS_SIZE)
        a('v_lshrrev_b32 v1, 3, v0')
        a('v_mul_u32_u24 v1, 96, v1')
        a('s_mul_i32 s10, s9, 768')
        a('v_add_u32 v1, s10, v1')
        a('s_lshl_b32 s10, s9, 2')
        a('v_mov_b32 v2, s10')
        a('v_mov_b32 v3, 0')
        a('v_and_b32 v9, 15, v0')
        a('v_lshlrev_b32 v9, 5, v9')
        a('v_and_b32 v8, 16, v0')
        a('v_add_u32 v9, v9, v8')
        a('v_and_b32 v8, 32, v0')
        a('v_lshl_add_u32 v9, v8, 4, v9')
        a('s_lshl_b32 s10, s9, 10')
        a('v_add_u32 v9, s10, v9')
        a('v_lshlrev_b32 v10, 3, v0')
        a('s_lshl_b32 s12, s6, 12')
        a('s_lshl_b32 s11, s7, 9')
        a('s_add_u32 s12, s12, s11')
        a(f's_add_u32 s12, s12, {WS_OP}')
        a(f's_add_u32 s13, s12, {WS_B}')
        a('s_waitcnt lgkmcnt(0)')
        self.tag_setup()
        a('v_mov_b32 v11, s47')
        a('s_barrier')
        self.stamp(2)
        a(f'ds_read_b128 v[12:15], v3 offset:{L_ML}')
        a(f'ds_read_b32 v2, v2 offset:{L_ML}')
        for k in range(6): a(f'ds_read_b128 v[{40+4*k}:{43+4*k}], v1 offset:{L_P+16*k}')
        a('s_waitcnt lgkmcnt(0)')
        a('v_max3_f32 v3, v12, v13, v14')
        a('v_max_f32 v3, v3, v15')
        a('v_sub_f32 v2, v2, v3')
        a(f'v_mul_f32 v2, {LOG2E:#x}, v2')
        a('v_exp_f32 v2, v2')
        def sel(u):
            for r in range(4): a(f'v_and_b32 v{24+4*(u&1)+r}, v{40+u}, v{4+r}')
        sel(0)
        a('v_mov_b32 v3, v2')
        W = DV if DV else 64
        for u in range(22):
            s = 24+4*(u&1)
            if u < 21: sel(u+1)
            n0 = max(NT-2-2*u, 0)
            if n0 < W: a(f's_waitcnt vmcnt({n0})')
            c0 = 'v[32:35]' if u else '0'
            c1 = 'v[36:39]' if u else '0'
            a(f'v_mfma_f32_16x16x32_bf16 v[32:35], v[{s}:{s+3}], v[{D0+8*u}:{D0+8*u+3}], {c0}')
            if u < 21:
                n1 = max(NT-3-2*u, 0)
                if n1 < W: a(f's_waitcnt vmcnt({n1})')
                a(f'v_mfma_f32_16x16x32_bf16 v[36:39], v[{s}:{s+3}], v[{D0+8*u+4}:{D0+8*u+7}], {c1}')
        self.stamp(3)
        a('v_pk_mul_f32 v[24:25], v[36:37], v[2:3]')
        a('v_pk_mul_f32 v[26:27], v[38:39], v[2:3]')
        a('s_mov_b32 exec_hi, 0')
        a('v_pk_mul_f32 v[24:25], v[32:33], v[2:3]')
        a('v_pk_mul_f32 v[26:27], v[34:35], v[2:3]')
        a('s_mov_b32 exec_hi, -1')
        a(f'ds_write_b128 v9, v[24:27] offset:{L_OP}')
        a('s_waitcnt lgkmcnt(0)')
        a('s_barrier')
        a('s_cmp_lg_u32 s9, 0')
        a('s_cbranch_scc1 L_vfin')
        for k in range(8): a(f'ds_read_b64 v[{40+2*k}:{41+2*k}], v10 offset:{L_OP+512*k}')
        a('s_waitcnt lgkmcnt(0)')
        self.tree_add([range(40, 56, 2), range(41, 56, 2)])
        self.tagw(40, 11); self.tagw(41, 11)
        a('buffer_store_dwordx2 v[40:41], v10, s[48:51], s12 offen')
        a('buffer_store_dwordx2 v[40:41], v10, s[48:51], s13 offen sc1')
        a.label('L_vfin')
        self.stamp(4)
        self.finish()

    def s_issue(self):
        a, o = self.a, self.o
        a.label('L_S')
        a('v_lshrrev_b32 v1, 3, v0')
        a('v_and_b32 v3, 7, v0')
        a('v_lshlrev_b32 v3, 4, v3')
        a('s_movk_i32 s54, 1024')
        a('s_mov_b32 s55, 0x20000')
        a('s_mov_b32 s58, 3145728')
        a('s_mov_b32 s59, 0x20000')
        a('s_cmp_ge_u32 s3, 4')
        a('s_cbranch_scc1 L_F')
        a('s_lshr_b32 s8, s2, 1')
        a('s_and_b32 s7, s2, 1')
        a(f's_mov_b32 s10, {8*6144}')
        a('v_mad_u32_u24 v2, v1, s10, v3')
        a('s_lshl_b32 s10, s7, 2')
        a('s_add_u32 s10, s10, s9')
        a('s_lshl_b32 s11, s10, 7')
        a(f's_mul_i32 s10, s10, {64*6144}')
        a('s_lshl_b32 s12, s8, 7')
        a('s_add_u32 s10, s10, s12')
        a('v_lshlrev_b32 v18, 1, v0')
        a('s_movk_i32 s12, 6144')
        a('s_waitcnt lgkmcnt(0)')
        a('s_mov_b32 s52, s36'); a('s_and_b32 s53, s37, 0xffff')
        a('s_mov_b32 s56, s38'); a('s_and_b32 s57, s39, 0xffff')
        a('buffer_load_ushort v8, v18, s[52:55], s11 offen')
        for t in range(8):
            a(f'buffer_load_dwordx4 v[{64+4*t}:{67+4*t}], v2, s[56:59], s10 offen {o.aflags}')
            if t < 7: a('s_add_u32 s10, s10, s12')
        a(f's_load_dword s46, s[44:45], {WS_EPOCH}')
        a('s_barrier')
        a('s_branch L_S0')
        a.label('L_F')
        a('v_mov_b32 v4, 0'); a('v_mov_b32 v5, 0'); a('v_mov_b32 v6, 0'); a('v_mov_b32 v7, 0')
        a(f'ds_write_b128 v4, v[4:7] offset:{L_CNT}')
        if o.warm:
            a('v_mov_b32 v9, v3')
            self.code_prefetch('L_S0', 'L_A0', 's')
        a('s_waitcnt lgkmcnt(0)')
        a('s_barrier')
        a('s_branch L_F0')

    def spath(self):
        a, o = self.a, self.o
        self.stamp(1)
        self.srd(48, 44, WS_SIZE)
        self.masks(4, 20)
        self.red_setup()
        a('s_lshl_b32 s10, s9, 8')
        a('v_lshl_add_u32 v2, v0, 2, s10')
        a('v_lshl_add_u32 v9, v1, 5, s10')
        a('s_waitcnt vmcnt(8) lgkmcnt(0)')
        self.tag_setup()
        a('v_lshlrev_b32 v8, 16, v8')
        self.silu([8], 40)
        a(f'ds_write_b32 v2, v8 offset:{L_SC}')
        a(f'ds_read_b128 v[44:47], v9 offset:{L_SC}')
        a(f'ds_read_b128 v[48:51], v9 offset:{L_SC+16}')
        a('s_waitcnt lgkmcnt(0)')
        self.mfma64(44, 64, 8, {0: 's_waitcnt vmcnt(4)', 4: 's_waitcnt vmcnt(0)'})
        self.red4(L_RA, L_CNT, 'L_Adone')
        a('s_cmp_lt_u32 s8, 16')
        a('s_cbranch_scc0 L_Anarrow')
        a('v_mov_b32 v41, s46')
        a('v_lshlrev_b32 v2, 3, v18')
        a('s_lshl_b32 s10, s8, 9')
        a('s_lshl_b32 s11, s7, 13')
        a('s_add_u32 s10, s10, s11')
        a(f's_add_u32 s10, s10, {WS_MODW}')
        a('buffer_store_dwordx2 v[40:41], v2, s[48:51], s10 offen sc1')
        a('s_branch L_Adone')
        a.label('L_Anarrow')
        a('v_mov_b32 v41, s47')
        a('v_lshlrev_b32 v2, 2, v18')
        a('s_lshl_b32 s10, s8, 8')
        a('s_lshl_b32 s11, s7, 13')
        a('s_add_u32 s10, s10, s11')
        a(f's_add_u32 s10, s10, {WS_MOD - 4096}')
        self.tagw(40, 41)
        a('buffer_store_dword v40, v2, s[48:51], s10 offen sc1')
        a.label('L_Adone')
        self.stamp(2)
        a('s_branch L_T')
        a.label('L_F0')
        r3 = 9 if o.warm else 3
        DF = o.depthf
        a(f's_load_dword s46, s[44:45], {WS_EPOCH}')
        a('s_mov_b32 s52, s16'); a('s_and_b32 s53, s17, 0xffff')
        a('v_lshlrev_b32 v2, 4, v0')
        a('v_lshlrev_b32 v20, 2, v0')
        a('s_lshl_b32 s11, s9, 8')
        a('buffer_load_dwordx4 v[10:13], v2, s[52:55], 0 offen')
        a('buffer_load_dword v14, v20, s[52:55], s11 offen')
        a('s_mov_b32 s52, s36'); a('s_and_b32 s53, s37, 0xffff')
        a('buffer_load_dword v8, v20, s[52:55], s11 offen')
        self.srd(60, 22, 4194304)
        a(f'v_lshl_add_u32 v15, v1, 17, v{r3}')
        a('s_lshl_b32 s10, s9, 20')
        a('s_lshl_b32 s11, s4, 10')
        a('s_add_u32 s10, s10, s11')
        a('s_lshl_b32 s11, s5, 7')
        a('s_add_u32 s70, s10, s11')
        a('s_movk_i32 s12, 8192')
        for t in range(16):
            if DF and t >= DF: a(f's_waitcnt vmcnt({DF-1})')
            a(f'buffer_load_dwordx4 v[{64+4*t}:{67+4*t}], v15, s[60:63], s70 offen {o.aflags}')
            if t < 15: a('s_add_u32 s70, s70, s12')
            if t == (DF-1 if DF else 15):
                self.srd(48, 44, WS_SIZE)
                self.masks(4, 22)
                self.red_setup()
                a(f's_mov_b32 s10, {16*6144}')
                a(f'v_mad_u32_u24 v21, v1, s10, v{r3}')
                a(f's_waitcnt vmcnt({t+1}) lgkmcnt(0)')
                self.tag_setup()
                for r in range(4):
                    a(f'v_lshlrev_b32 v{44+2*r}, 16, v{10+r}'); a(f'v_and_b32 v{45+2*r}, 0xffff0000, v{10+r}')
                a('v_add_f32 v10, v44, v45'); a('v_mul_f32 v11, v44, v44')
                a('v_fmac_f32 v11, v45, v45')
                for r in range(46, 52):
                    a(f'v_add_f32 v10, v10, v{r}'); a(f'v_fmac_f32 v11, v{r}, v{r}')
                self.allred_row('v_add_f32', 10); self.allred_row('v_add_f32', 11)
                self.allred_rows('v_add_f32', 10, 22); self.allred_rows('v_add_f32', 11, 22)
                self.ln_scalars(10, 11, 22, 23, 12)
                a('v_lshlrev_b32 v12, 16, v14'); a('v_and_b32 v13, 0xffff0000, v14')
                for r in (12, 13): a(f'v_sub_f32 v{r}, v{r}, v22')
                for r in (12, 13): self.rnd(r, r)
                for r in (12, 13): a(f'v_mul_f32 v{r}, v{r}, v23')
                for r in (12, 13): self.rnd(r, r)
        self.stamp(1)
        a('s_lshl_b32 s10, s9, 10')
        a(f's_add_u32 s10, s10, {WS_MODW}')
        a(f's_add_u32 s11, s10, 8192')
        a(f's_add_u32 s12, s10, 4096')
        a(f's_add_u32 s13, s10, {8192+4096}')
        a(f's_waitcnt vmcnt({o.f1wait})')
        def iss1():
            for i, sr in enumerate(('s10', 's11', 's12', 's13')):
                a(f'buffer_load_dwordx4 v[{44+4*i}:{47+4*i}], v2, s[48:51], {sr} offen sc1')
            if o.gate == 1:
                lab = a.newlabel('Lng')
                a('s_cmp_ge_u32 s5, 6'); a(f's_cbranch_scc1 {lab}')
                self.gate_signal()
                a.label(lab)
        self.poll(iss1, range(45, 60, 2), 10, sleep=o.sleep1, wide=True)
        self.stamp(3)
        a('s_cmp_lt_u32 s5, 6')
        a('s_cbranch_scc1 L_noA2')
        a('s_mov_b32 s56, s38'); a('s_and_b32 s57, s39, 0xffff')
        a('s_sub_u32 s8, s2, 16')
        a(f's_mul_i32 s70, s9, {128*6144}')
        a('s_lshl_b32 s11, s8, 7')
        a('s_add_u32 s70, s70, s11')
        for t in range(o.a2first):
            a(f'buffer_load_dwordx4 v[{128+4*t}:{131+4*t}], v21, s[56:59], s70 offen {o.aflags}')
            a('s_add_u32 s70, s70, 6144')
        a.label('L_noA2')
        for d in (0, 2):
            a(f'v_add_f32 v{44+d}, v{44+d}, v{48+d}'); a(f'v_add_f32 v{52+d}, v{52+d}, v{56+d}')
        for r in (44, 46, 52, 54): self.rnd(r, r)
        for r in (52, 54): a(f'v_add_f32 v{r}, 1.0, v{r}')
        for r in (52, 54): self.rnd(r, r)
        a('v_mul_f32 v12, v12, v52'); a('v_mul_f32 v13, v13, v54')
        for r in (12, 13): self.rnd(r, r)
        a('v_add_f32 v12, v12, v44'); a('v_add_f32 v13, v13, v46')
        for r in (12, 13): a(f'v_cvt_pk_bf16_f32 v{r}, v{r}, v{r}')
        a('s_lshl_b32 s10, s9, 9')
        a('v_lshl_add_u32 v2, v0, 3, s10')
        a('v_lshl_add_u32 v3, v1, 6, s10')
        a(f'ds_write_b64 v2, v[12:13] offset:{L_H}')
        for k in range(4): a(f'ds_read_b128 v[{192+4*k}:{195+4*k}], v3 offset:{L_H+16*k}')
        a('s_waitcnt lgkmcnt(0)')
        self.mfma64(192, 64, 16)
        self.red4(L_RB, L_CNT+4, 'L_Bdone')
        self.rnd(40, 40)
        a('v_or_b32 v40, s71, v40')
        a('v_lshlrev_b32 v41, 2, v18')
        a('s_lshl_b32 s10, s4, 11')
        a('s_lshl_b32 s11, s5, 8')
        a('s_add_u32 s10, s10, s11')
        a(f's_add_u32 s10, s10, {WS_QF}')
        a(f's_add_u32 s11, s10, {WS_B}')
        a('buffer_store_dword v40, v41, s[48:51], s10 offen')
        a('buffer_store_dword v40, v41, s[48:51], s11 offen sc1')
        a.label('L_Bdone')
        self.stamp(4)
        a('s_cmp_lt_u32 s5, 6')
        a('s_cbranch_scc1 L_sfin')
        for t in range(o.a2first, 16):
            a(f'buffer_load_dwordx4 v[{128+4*t}:{131+4*t}], v21, s[56:59], s70 offen {o.aflags}')
            if t < 15: a('s_add_u32 s70, s70, 6144')
        if o.gate: self.gate_signal()
        a('v_lshlrev_b32 v12, 16, v8'); a('v_and_b32 v13, 0xffff0000, v8')
        self.silu([12, 13], 44)
        a(f'ds_write_b64 v2, v[12:13] offset:{L_H}')
        for k in range(4): a(f'ds_read_b128 v[{192+4*k}:{195+4*k}], v3 offset:{L_H+16*k}')
        a('s_waitcnt lgkmcnt(0)')
        self.mfma64(192, 128, 16, {0: 's_waitcnt vmcnt(8)', 8: 's_waitcnt vmcnt(0)'})
        self.red4(L_RC, L_CNT+8, 'L_sfin')
        a('v_mov_b32 v42, s47')
        a('v_lshlrev_b32 v41, 2, v18')
        a('s_lshl_b32 s10, s8, 8')
        a(f's_add_u32 s10, s10, {WS_MOD - 4096}')
        a('s_add_u32 s11, s10, 8192')
        self.tagw(40, 42)
        a('buffer_store_dword v40, v41, s[48:51], s10 offen sc1')
        a('buffer_store_dword v42, v41, s[48:51], s11 offen sc1')
        self.stamp(5)
        a.label('L_sfin')
        self.finish()

    def tpath(self):
        a, o = self.a, self.o
        WF = o.wflags
        a.label('L_T')
        if o.warm: self.chain('t', 4, 0)
        if o.gate: self.lds_spin(L_CNT+12, ge=4)
        DT = o.deptht
        def pace():
            if DT: a(f's_waitcnt vmcnt({DT-1})')
        a('v_and_b32 v3, 7, v0')
        a('v_lshlrev_b32 v3, 4, v3')
        a('v_lshl_add_u32 v2, v1, 14, v3')
        self.srd(56, 24, 4194304)
        a('s_lshl_b32 s10, s4, 19')
        a('s_lshl_b32 s11, s9, 17')
        a('s_add_u32 s10, s10, s11')
        a('s_lshl_b32 s11, s5, 7')
        a('s_add_u32 s10, s10, s11')
        for t in range(16):
            pace()
            a(f'buffer_load_dwordx4 v[{64+4*t}:{67+4*t}], v2, s[56:59], s10 offen offset:{(t%4)*1024} {o.aflags}')
            if t % 4 == 3 and t < 15: a('s_add_u32 s10, s10, 4096')
        a('s_mul_i32 s76, s4, 6')
        a('s_add_u32 s76, s76, s5')
        a('s_cmp_lt_u32 s5, 6')
        a('s_cselect_b32 s76, s76, 100')
        a('s_cmp_lt_u32 s76, 43')
        a('s_cselect_b32 s77, 1, 0')
        a('s_lshl_b32 s10, s9, 6')
        a('v_add_u32 v17, s10, v0')
        a('v_lshlrev_b32 v18, 4, v0')
        a('v_lshlrev_b32 v20, 2, v0')
        a('v_lshlrev_b32 v21, 3, v0')
        a('v_lshlrev_b32 v23, 3, v17')
        a('v_and_b32 v15, 3, v0')
        a('s_lshl_b32 s78, s76, 4')
        a('s_and_b32 s78, s78, 511')
        a('v_lshrrev_b32 v34, 4, v0')
        a('v_lshl_add_u32 v34, v15, 2, v34')
        a('v_add_u32 v34, s78, v34')
        a('v_lshlrev_b32 v35, 1, v34')
        a('v_lshlrev_b32 v34, 2, v34')
        a('s_cmp_eq_u32 s77, 0')
        a('s_cbranch_scc1 L_nomlpw')
        self.srd(60, 28, 1409024)
        a('v_lshrrev_b32 v2, 2, v17')
        a(f's_movk_i32 s10, {8*2752}')
        a('v_mul_lo_u32 v2, v2, s10')
        a('v_lshl_add_u32 v2, v15, 4, v2')
        a('s_lshl_b32 s10, s76, 6')
        for t in range(8):
            pace()
            a(f'buffer_load_dwordx4 v[{128+4*t}:{131+4*t}], v2, s[60:63], s10 offen offset:{(t%2)*2752} {WF}')
            if t % 2 == 1 and t < 7: a(f's_add_u32 s10, s10, {2*2752}')
        self.srd(60, 32, 1409024)
        a('s_lshl_b32 s10, s76, 15')
        a('s_lshl_b32 s11, s9, 13')
        a('s_add_u32 s10, s10, s11')
        a(f's_add_u32 m0, s11, {L_W2}')
        a('s_add_u32 s12, s10, 4096')
        for f in range(8):
            if f == 4: a('s_add_u32 m0, m0, 4096'); a('s_nop 0')
            pace()
            a(f'buffer_load_dwordx4 v18, s[60:63], {"s10" if f < 4 else "s12"} offen offset:{(f%4)*1024} {o.aflags} lds')
        self.srd(60, 16, 1024)
        a('v_lshlrev_b32 v36, 2, v17')
        a('buffer_load_dword v36, v36, s[60:63], 0 offen')
        self.srd(60, 30, 2752)
        a('v_and_b32 v38, 31, v0')
        a('v_lshlrev_b32 v38, 1, v38')
        a('s_lshl_b32 s10, s76, 6')
        a('buffer_load_ushort v38, v38, s[60:63], s10 offen')
        self.srd(60, 34, 1024)
        a('buffer_load_ushort v19, v35, s[60:63], 0 offen')
        if o.tst == 1: self.stamp(1)
        a(f's_mov_b32 s10, {WS_MOD}')
        a(f's_mov_b32 s11, {WS_MOD+4096}')
        a(f's_mov_b32 s12, {WS_MOD+8192}')
        a(f's_mov_b32 s13, {WS_MOD+8192+4096}')
        def issm():
            a('buffer_load_dwordx2 v[40:41], v23, s[48:51], s10 offen sc1')
            a('buffer_load_dwordx2 v[42:43], v23, s[48:51], s10 offen offset:2048 sc1')
            a('buffer_load_dwordx2 v[44:45], v23, s[48:51], s11 offen sc1')
            a('buffer_load_dword v46, v34, s[48:51], s11 offen offset:2048 sc1')
            a('buffer_load_dwordx2 v[48:49], v23, s[48:51], s12 offen sc1')
            a('buffer_load_dwordx2 v[50:51], v23, s[48:51], s12 offen offset:2048 sc1')
            a('buffer_load_dwordx2 v[52:53], v23, s[48:51], s13 offen sc1')
            a('buffer_load_dword v54, v34, s[48:51], s13 offen offset:2048 sc1')
        self.poll(issm, list(range(40, 47)) + list(range(48, 55)), 10, sleep=8)
        for r in range(7): a(f'v_add_f32 v{40+r}, v{40+r}, v{48+r}')
        for d, s in ((24, 40), (25, 41), (28, 42), (29, 43), (26, 44), (27, 45), (30, 46)): self.rnd(d, s)
        for r in (26, 27): a(f'v_add_f32 v{r}, 1.0, v{r}')
        for r in (26, 27): self.rnd(r, r)
        a.label('L_nomlpw')
        a('s_mov_b32 s73, 0x05040100')
        a('s_mov_b32 s74, 0x07060302')
        a('v_mov_b32 v9, s47')
        a('s_lshl_b32 s10, s9, 2')
        a('v_lshlrev_b32 v16, 4, v1')
        a('v_lshl_add_u32 v14, v3, 3, v16')
        a('v_add_u32 v14, s10, v14')
        a('v_lshl_add_u32 v16, v15, 7, v16')
        a('v_add_u32 v16, s10, v16')
        a('s_waitcnt vmcnt(0)')
        self.stamp(3)
        self.pairs(64, 192, 8)
        a('s_cmp_eq_u32 s77, 0')
        a('s_cbranch_scc1 L_nopair')
        a('s_barrier')
        a('s_lshl_b32 s10, s9, 8')
        a(f's_add_u32 s10, s10, {L_W2}')
        a('v_add_u32 v2, s10, v20')
        for f in range(8): a(f'ds_read2st64_b32 v[{160+2*f}:{161+2*f}], v2 offset0:{8*f} offset1:{8*f+4}')
        a('s_waitcnt lgkmcnt(0)')
        for f in range(8, 16): a(f'ds_read2st64_b32 v[{160+2*f}:{161+2*f}], v2 offset0:{8*f} offset1:{8*f+4}')
        self.pairs(128, 64, 4)
        a('s_waitcnt lgkmcnt(0)')
        for k in range(16):
            a(f'v_perm_b32 v{96+k}, v{161+2*k}, v{160+2*k}, s73')
            a(f'v_perm_b32 v{112+k}, v{161+2*k}, v{160+2*k}, s74')
        a('v_and_b32 v37, 0xffff0000, v36')
        a('v_lshlrev_b32 v36, 16, v36')
        a('v_lshlrev_b32 v38, 16, v38')
        a('v_lshlrev_b32 v19, 16, v19')
        a.label('L_nopair')
        self.stamp(4)
        a('s_lshl_b32 s10, s4, 2')
        a('s_add_u32 s10, s10, s9')
        a('s_lshl_b32 s79, s10, 12')
        a(f's_add_u32 s79, s79, {WS_OP}')
        a('s_lshl_b32 s10, s10, 9')
        a(f's_add_u32 s10, s10, {WS_ST}')
        a('v_and_b32 v22, 31, v0')
        a('v_min_u32 v22, 23, v22')
        a('v_lshlrev_b32 v22, 4, v22')
        a('s_getreg_b32 s75, hwreg(HW_REG_XCC_ID)')
        a('s_lshl_b32 s75, s75, 8')
        self.poll(lambda: a('buffer_load_dwordx4 v[152:155], v22, s[48:51], s10 offen sc1'), (152, 153, 154, 155), 10, sleep=o.sleeps, dual=('s10',))
        a('v_cmp_ne_u32 vcc, s75, v154')
        a('v_mov_b32 v10, v152')
        a('s_cmp_lg_u64 vcc, 0')
        a(f's_cselect_b32 s10, {WS_B}, 0')
        a('s_add_u32 s79, s79, s10')
        self.allred_row('v_max_f32', 10, 2)
        a('v_mov_b32 v11, v10')
        for m in ('row_half_mirror', 'row_mirror'): a(f'v_max_f32_dpp v11, v11, v11 {m} {ALL}')
        a('v_mov_b32 v12, v11')
        a('v_permlane16_swap_b32 v11, v12')
        a('v_max_f32 v11, v11, v12')
        a('v_sub_f32 v152, v152, v11')
        a('v_sub_f32 v10, v10, v11')
        a(f'v_mul_f32 v152, {LOG2E:#x}, v152')
        a(f'v_mul_f32 v10, {LOG2E:#x}, v10')
        a('v_exp_f32 v152, v152')
        a('v_exp_f32 v10, v10')
        a('s_mov_b32 s10, 0x00ffffff'); a('s_mov_b32 s11, 0x00ffffff')
        a('v_mul_f32 v11, v152, v153')
        a('v_cndmask_b32 v11, 0, v11, s[10:11]')
        self.allred_row('v_add_f32', 11)
        a('v_mov_b32 v12, v11')
        a('v_permlane16_swap_b32 v11, v12')
        a('v_add_f32 v11, v11, v12')
        a('v_rcp_f32 v11, v11')
        a('v_mul_f32 v10, v10, v11')
        for s in range(6): a(f'v_readlane_b32 s{64+s}, v10, {4*s}')
        for r in range(40, 60): a(f'v_mov_b32 v{r}, 0')
        a('s_lshr_b32 s10, s5, 1')
        a('s_lshl_b32 s10, s10, 12')
        a('s_lshl_b32 s11, s4, 9')
        a('s_add_u32 s10, s10, s11')
        a('s_and_b32 s11, s5, 1')
        a('s_lshl_b32 s11, s11, 8')
        a('s_add_u32 s10, s10, s11')
        a(f's_add_u32 s75, s10, {WS_AP}')
        def iss(base, n):
            def f():
                for s in range(n): a(f'buffer_load_dwordx2 v[{136+2*s}:{137+2*s}], v21, s[48:51], {base} offen offset:{512*s} sc1')
            return f
        self.stamp(5)
        self.poll(iss('s79', 6), range(136, 148), 10, sleep=o.sleep2)
        self.stamp(6)
        for d in range(2): a(f'v_mul_f32 v{156+d}, s64, v{136+d}')
        for s in range(1, 6):
            for d in range(2): a(f'v_fmac_f32 v{156+d}, s{64+s}, v{136+2*s+d}')
        a('v_cvt_pk_bf16_f32 v10, v156, v157')
        a('v_cvt_pk_bf16_f32 v11, v156, v157')
        a('v_mov_b32_dpp v10, v10 row_shr:4 row_mask:0xf bank_mask:0xa')
        a('v_mov_b32_dpp v11, v11 row_shl:4 row_mask:0xf bank_mask:0x5')
        for k in range(8):
            q = k & 3
            for n in range(8): a(f'v_dot2c_f32_bf16_dpp v{40+n}, v{10+(k>>2)}, v{192+8*k+n} quad_perm:[{q},{q},{q},{q}] {ALL}')
        self.red8(40)
        a(f'ds_write_b32 v14, v40 offset:{L_R2}')
        a('s_waitcnt lgkmcnt(0)')
        a('s_barrier')
        a('s_cmp_lg_u32 s9, 0')
        a('s_cbranch_scc1 L_t2done')
        a(f'ds_read_b128 v[40:43], v18 offset:{L_R2}')
        a('s_waitcnt lgkmcnt(0)')
        a('v_add_f32 v40, v40, v41')
        a('v_add_f32 v42, v42, v43')
        a('v_add_f32 v40, v40, v42')
        self.tagw(40, 9)
        a('buffer_store_dword v40, v20, s[48:51], s75 offen sc1')
        a.label('L_t2done')
        a('s_cmp_eq_u32 s77, 0')
        a('s_cbranch_scc1 L_fin')
        a('s_lshl_b32 s79, s9, 12')
        a(f's_add_u32 s79, s79, {WS_AP}')
        a('v_lshrrev_b32 v12, 5, v0')
        a('v_lshlrev_b32 v12, 4, v12')
        a('s_lshl_b32 s10, s9, 2')
        a('v_add_u32 v12, s10, v12')
        a('v_mov_b32 v13, 0')
        a('v_and_b32 v14, 31, v0')
        a('v_lshlrev_b32 v14, 4, v14')
        a('s_lshl_b32 s75, s76, 11')
        a('s_lshl_b32 s11, s9, 9')
        a('s_add_u32 s75, s75, s11')
        a(f's_add_u32 s75, s75, {WS_ZP}')
        if o.ack3:
            a('s_waitcnt vmcnt(0)')
            a('s_barrier')
        self.poll(iss('s79', 8), range(136, 152), 10, sleep=o.sleep3)
        self.stamp(7)
        X, Y = 136, 137
        self.tree_add([range(136, 152, 2), range(137, 152, 2)])
        for r in (X, Y): self.rnd(r, r)
        a(f'v_mul_f32 v{X}, v24, v{X}'); a(f'v_mul_f32 v{Y}, v25, v{Y}')
        for r in (X, Y): self.rnd(r, r)
        a(f'v_add_f32 v{X}, v36, v{X}'); a(f'v_add_f32 v{Y}, v37, v{Y}')
        for r in (X, Y): self.rnd(r, r)
        a(f'ds_write_b64 v23, v[{X}:{Y}] offset:{L_X1}')
        def ln(off):
            a(f'v_add_f32 v40, v{X}, v{Y}')
            a(f'v_mul_f32 v41, v{X}, v{X}')
            a(f'v_fmac_f32 v41, v{Y}, v{Y}')
            a('v_permlane32_swap_b32 v40, v41')
            a('v_add_f32 v40, v40, v41')
            self.allred_row('v_add_f32', 40)
            a('v_mov_b32 v41, v40')
            a('v_permlane16_swap_b32 v40, v41')
            a('v_add_f32 v40, v40, v41')
            self.setexec(1, 1)
            a(f'ds_write_b32 v12, v40 offset:{off}')
            a('s_mov_b64 exec, -1')
            a('s_waitcnt lgkmcnt(0)')
            a('s_barrier')
            a(f'ds_read_b128 v[40:43], v13 offset:{off}')
            a(f'ds_read_b128 v[44:47], v13 offset:{off+16}')
            a('s_waitcnt lgkmcnt(0)')
            self.tree_add([range(40, 44), range(44, 48)])
            self.ln_scalars(40, 44, 41, 42, 43)
            for r in (X, Y): a(f'v_sub_f32 v{r}, v{r}, v41')
            for r in (X, Y): self.rnd(r, r)
            for r in (X, Y): a(f'v_mul_f32 v{r}, v{r}, v42')
        ln(L_SA)
        for r in (X, Y): self.rnd(r, r)
        a(f'v_mul_f32 v{X}, v26, v{X}'); a(f'v_mul_f32 v{Y}, v27, v{Y}')
        for r in (X, Y): self.rnd(r, r)
        a(f'v_add_f32 v{X}, v28, v{X}'); a(f'v_add_f32 v{Y}, v29, v{Y}')
        for r in (X, Y): self.rnd(r, r)
        ln(L_SB2)
        a(f'v_cvt_pk_bf16_f32 v10, v{X}, v{Y}')
        for k in range(4):
            for n in range(8): a(f'v_dot2c_f32_bf16_dpp v{48+n}, v10, v{64+8*k+n} quad_perm:[{k},{k},{k},{k}] {ALL}')
        self.red8(48)
        a('v_add_f32_dpp v48, v48, v48 row_shl:4 row_mask:0xf bank_mask:0x5')
        self.setexec(0x0f0f0f0f, 0x0f0f0f0f)
        a(f'ds_write_b32 v16, v48 offset:{L_R3}')
        a('s_mov_b64 exec, -1')
        a('s_waitcnt lgkmcnt(0)')
        a('s_barrier')
        a(f'ds_read_b128 v[40:43], v14 offset:{L_R3}')
        a(f'ds_read_b32 v31, v34 offset:{L_X1}')
        a('s_waitcnt lgkmcnt(1)')
        a('v_add_f32 v40, v40, v41')
        a('v_add_f32 v42, v42, v43')
        a('v_add_f32 v40, v40, v42')
        self.rnd(40, 40)
        a('v_add_f32 v40, v40, v38')
        self.rnd(40, 40)
        k0 = 0.7978845608028654; k1 = 0.044715
        c1 = -2*k0*1.4426950408889634
        a('v_mul_f32 v41, v40, v40')
        a(f'v_mov_b32 v42, {f32(c1)}')
        a(f'v_fmac_f32 v42, {f32(c1*k1)}, v41')
        a('v_mul_f32 v41, v42, v40')
        a('v_exp_f32 v41, v41')
        a('v_add_f32 v41, 1.0, v41')
        a('v_rcp_f32 v41, v41')
        a('v_mul_f32 v40, v40, v41')
        a(f'v_mov_b32_dpp v41, v40 quad_perm:[1,0,3,2] {ALL}')
        a('v_cvt_pk_bf16_f32 v42, v40, v41')
        a('v_cvt_pk_bf16_f32 v43, v40, v41')
        a('v_permlane16_swap_b32 v42, v43')
        for k in range(16):
            src = 42 + (k >> 3)
            a(f'v_dot2c_f32_bf16_dpp v{56+2*(k&1)}, v{src}, v{96+k} row_newbcast:{2*(k&7)} {ALL}')
            a(f'v_dot2c_f32_bf16_dpp v{57+2*(k&1)}, v{src}, v{112+k} row_newbcast:{2*(k&7)} {ALL}')
        a('v_add_f32 v56, v56, v58')
        a('v_add_f32 v57, v57, v59')
        self.tagw(56, 9); self.tagw(57, 9)
        a('buffer_store_dwordx2 v[56:57], v21, s[48:51], s75 offen sc1')
        self.stamp(8)
        a('s_cmp_ge_u32 s76, 32')
        a('s_cbranch_scc1 L_fin')
        a('s_cmp_lg_u32 s9, 0')
        a('s_cbranch_scc1 L_fin')
        a('v_lshrrev_b32 v12, 2, v0')
        a('v_lshlrev_b32 v12, 11, v12')
        a('v_lshl_add_u32 v12, v15, 4, v12')
        a('s_lshl_b32 s10, s78, 2')
        a(f's_add_u32 s10, s10, {WS_ZP}')
        a(f's_add_u32 s11, s10, {16*2048}')
        a(f's_add_u32 s12, s10, {32*2048}')
        self.srd(60, 40, 1024)
        def iss4():
            a('buffer_load_dwordx4 v[136:139], v12, s[48:51], s10 offen sc1')
            a('buffer_load_dwordx4 v[140:143], v12, s[48:51], s11 offen sc1')
            for r in range(144, 148): a(f'v_mov_b32 v{r}, v9')
            a('s_mov_b32 exec_hi, 0xfff')
            a('buffer_load_dwordx4 v[144:147], v12, s[48:51], s12 offen sc1')
            a('s_mov_b32 exec_hi, -1')
        if o.ack4: a('s_waitcnt vmcnt(0)')
        self.poll(iss4, range(136, 148), 10, sleep=o.sleep4)
        for d in range(4): a(f'v_add_f32 v{136+d}, v{136+d}, v{140+d}')
        for d in range(4): a(f'v_add_f32 v{136+d}, v{136+d}, v{144+d}')
        a('v_permlane32_swap_b32 v136, v138')
        a('v_permlane32_swap_b32 v137, v139')
        a('v_add_f32 v136, v136, v138')
        a('v_add_f32 v137, v137, v139')
        a('v_permlane16_swap_b32 v136, v137')
        a('v_add_f32 v136, v136, v137')
        for m in ('row_ror:8', 'row_ror:4'):
            a(f'v_add_f32_dpp v136, v136, v136 {m} {ALL}')
        a('s_waitcnt lgkmcnt(0)')
        self.rnd(136, 136)
        a('v_add_f32 v136, v136, v19')
        self.rnd(136, 136)
        a('v_mul_f32 v136, v136, v30')
        self.rnd(136, 136)
        a('v_add_f32 v136, v136, v31')
        a('v_cvt_pk_bf16_f32 v136, v136, v136')
        self.setexec(0x000f000f, 0x000f000f)
        a('buffer_store_short v136, v35, s[60:63], 0 offen')
        a('s_cmp_lg_u32 s2, 0')
        a('s_cbranch_scc1 L_fin')
        a('s_mov_b64 exec, 1')
        a('v_mov_b32 v12, 0')
        a('v_mov_b32 v13, s46')
        a(f'buffer_store_dword v13, v12, s[48:51], 0 offen offset:{WS_EPOCH}')
        a.label('L_fin')
        self.stamp(9)
        self.finish()

    def dump(self):
        a = self.a
        a.label('L_dump')
        a('s_mov_b64 exec, -1')
        a('s_waitcnt lgkmcnt(0)')
        a('v_mov_b32 v5, 0')
        for k in range(10): a(f'v_writelane_b32 v5, s{80+2*k}, {k}')
        a('s_getreg_b32 s10, hwreg(HW_REG_XCC_ID)')
        a('v_writelane_b32 v5, s10, 10')
        a('v_writelane_b32 v5, s15, 11')
        a('v_lshlrev_b32 v6, 2, v0')
        a('s_mov_b64 exec, 0xffff')
        if self.o.dbg:
            a('v_subrev_u32 v5, s80, v5')
            self.srd(12, 42, 64)
            a('s_lshl_b32 s10, s2, 3'); a('s_add_u32 s10, s10, s3')
            a('s_cmp_eq_u32 s10, 0'); a('s_cbranch_scc1 L_dbgk')
            a(f's_cmp_lg_u32 s10, {64*8+4}'); a('s_cbranch_scc1 L_end')
            a('s_mov_b64 exec, 0x7e')
            a('buffer_store_dword v5, v6, s[12:15], 0 offen offset:36')
            a('s_endpgm')
            a.label('L_dbgk')
            a('s_mov_b64 exec, 0x3ff')
            a('buffer_store_dword v5, v6, s[12:15], 0 offen')
            a('s_endpgm')
            return
        a('s_lshl_b32 s10, s2, 3')
        a('s_add_u32 s10, s10, s3')
        a('s_lshl_b32 s10, s10, 6')
        a('s_add_u32 s12, s44, 0x8000000')
        a('s_addc_u32 s13, s45, 0')
        a('s_and_b32 s13, s13, 0xffff')
        a('s_mov_b32 s14, 0x1000000')
        a('s_mov_b32 s15, 0x20000')
        a('buffer_store_dword v5, v6, s[12:15], s10 offen')
        a('s_endpgm')

def header():
    ref = open('cdna_kernels/' + NAME + '.s.ref').read().split('\n')
    out = []
    for l in ref:
        if l.startswith('; @launch'): break
        out.append(l)
    return '\n'.join(out)

def emit(o):
    g = G(o); g.build()
    kn = NAME + '_kernel'
    s = header() + f'\n; @launch grid=(256,1,1) block=(512,1,1) lds={LDS_BYTES}\n'
    s += f'''.amdgcn_target "amdgcn-amd-amdhsa--gfx950"
.text
.globl {kn}
.p2align 12
.p2align 8
.type {kn},@function
{kn}:
{g.a.text()}
.section .rodata,"a"
.p2align 6
.amdhsa_kernel {kn}
  .amdhsa_next_free_vgpr 256
  .amdhsa_next_free_sgpr 102
  .amdhsa_accum_offset 256
  .amdhsa_group_segment_fixed_size 0
  .amdhsa_kernarg_size 120
  .amdhsa_user_sgpr_count 2
  .amdhsa_user_sgpr_kernarg_segment_ptr 1
  .amdhsa_system_sgpr_workgroup_id_x 1
  .amdhsa_float_denorm_mode_32 3
.end_amdhsa_kernel
'''
    return s

def parser():
    p = argparse.ArgumentParser()
    p.add_argument('-o', default='k.s')
    p.add_argument('--stamps', action='store_true')
    p.add_argument('--dbg', action='store_true')
    p.add_argument('--kvflags', default='nt')
    p.add_argument('--aflags', default='nt')
    p.add_argument('--wflags', default='')
    p.add_argument('--pattern', default='inter')
    p.add_argument('--rot', default='hash')
    p.add_argument('--dv1', type=int, default=2)
    p.add_argument('--n1', type=int, default=0)
    p.add_argument('--wq0', type=int, default=2)
    p.add_argument('--tst', type=int, default=0)
    p.add_argument('--fake', type=int, default=0)
    p.add_argument('--depthf', type=int, default=6)
    p.add_argument('--deptht', type=int, default=5)
    p.add_argument('--a2first', type=int, default=4)
    p.add_argument('--d0', type=int, default=0)
    p.add_argument('--n0', type=int, default=0)
    p.add_argument('--gate', type=int, default=1)
    p.add_argument('--first', type=int, default=8)
    p.add_argument('--f1wait', type=int, default=0)
    p.add_argument('--sleepq', type=int, default=4)
    p.add_argument('--ack3', type=int, default=1)
    p.add_argument('--ack4', type=int, default=1)
    p.add_argument('--sleep1', type=int, default=8)
    p.add_argument('--sleeps', type=int, default=8)
    p.add_argument('--depth', type=int, default=0)
    p.add_argument('--depthv', type=int, default=0)
    p.add_argument('--warm', type=int, default=1)
    p.add_argument('--hop', type=int, default=448)
    p.add_argument('--sleep2', type=int, default=0)
    p.add_argument('--sleep3', type=int, default=1)
    p.add_argument('--sleep4', type=int, default=1)
    p.add_argument('--meta', action='store_true')
    return p

META = """
.amdgpu_metadata
---
amdhsa.version: [1, 2]
amdhsa.kernels:
  - .name: {name}
    .symbol: {name}.kd
    .kernarg_segment_size: 120
    .kernarg_segment_align: 8
    .group_segment_fixed_size: 0
    .private_segment_fixed_size: 0
    .wavefront_size: 64
    .sgpr_count: 102
    .vgpr_count: 256
    .max_flat_workgroup_size: 512
    .args:
      - {{.name: kernargs, .size: 120, .offset: 0, .value_kind: by_value}}
...
.end_amdgpu_metadata
"""
if __name__ == '__main__':
    o = parser().parse_args()
    if o.dbg: o.stamps = True
    s = emit(o)
    if o.meta: s += META.format(name=NAME + '_kernel')
    open(o.o, 'w').write(s)
```
